```python
import torch

def _softmax(x, axis=-1):
    return torch.softmax(x, dim=axis)
def _gelu(x):
    return torch.nn.functional.gelu(x, approximate="tanh")
def _silu(x):
    return torch.nn.functional.silu(x)
def _sigmoid(x):
    return torch.sigmoid(x)
def _layernorm(x, axis=-1, eps=1e-5):
    m = x.mean(dim=axis, keepdim=True)
    v = x.var(dim=axis, keepdim=True, unbiased=False)
    return (x - m) / torch.sqrt(v + eps)
def _scatter_add(tgt, idx, src, axis=0):
    return tgt.clone().index_add_(axis, idx, src)
def _segment_sum(src, seg, n):
    out = torch.zeros((n,) + src.shape[1:], dtype=src.dtype)
    return out.index_add_(0, seg, src)
def _pad(x, pw):
    flat = tuple(v for pair in reversed(pw) for v in pair)
    return torch.nn.functional.pad(x, flat)

kernel_name = 'gated_mix__ssm_conv_s4__mha_block__prompt'

def setup_inputs():

    _w = (lambda a: (lambda t: t.to(torch.bfloat16) if t.is_floating_point() else t)(torch.as_tensor(a)))
    def _A_setup():
        B, L, D, N = 1, 2048, 512, 128
        A_re = -(lambda _x: torch.exp(torch.as_tensor(_x)))((lambda *s: torch.randn(*s, dtype=torch.bfloat16) * 6.4)(D, N))
        A_im = torch.pi * (lambda *s: torch.randn(*s, dtype=torch.bfloat16) * 0.1)(D, N)
        B_re = (lambda *s: torch.randn(*s, dtype=torch.bfloat16) * 0.2)(D, N)
        B_im = (lambda *s: torch.randn(*s, dtype=torch.bfloat16) * 0.2)(D, N)
        C_re = (lambda *s: torch.randn(*s, dtype=torch.bfloat16) * 0.2)(D, N)
        C_im = (lambda *s: torch.randn(*s, dtype=torch.bfloat16) * 0.2)(D, N)
        log_dt = (lambda *s: torch.randn(*s, dtype=torch.bfloat16) * 0.1)(D) * 0.5 - 4.0
        Dskip = (lambda *s: torch.randn(*s, dtype=torch.bfloat16) * 0.1)(D)
        return {
            "u": _w((lambda *s: torch.randn(*s, dtype=torch.bfloat16) * 0.05)(B, L, D)),
            "A_re": _w(A_re),
            "A_im": _w(A_im),
            "B_re": _w(B_re),
            "B_im": _w(B_im),
            "C_re": _w(C_re),
            "C_im": _w(C_im),
            "log_dt": _w(log_dt),
            "Dskip": _w(Dskip),
        }
    _A_in = _A_setup()

    def _B_setup():
        B, S, D, H = 1, 2048, 512, 32
        return {
            "x": _w((lambda *s: torch.randn(*s, dtype=torch.bfloat16) * 0.05)(B, S, D)),
            "wqkv": _w((lambda *s: torch.randn(*s, dtype=torch.bfloat16) * 0.8)(D, 3 * D)),
            "wo": _w((lambda *s: torch.randn(*s, dtype=torch.bfloat16) * 0.05)(D, D)),
        }
    _B_in = _B_setup()

    return {
        "A_u": _A_in["u"],
        "A_A_re": _A_in["A_re"],
        "A_A_im": _A_in["A_im"],
        "A_B_re": _A_in["B_re"],
        "A_B_im": _A_in["B_im"],
        "A_C_re": _A_in["C_re"],
        "A_C_im": _A_in["C_im"],
        "A_log_dt": _A_in["log_dt"],
        "A_Dskip": _A_in["Dskip"],
        "B_x": _B_in["x"],
        "B_wqkv": _B_in["wqkv"],
        "B_wo": _B_in["wo"],
        "gate_w": _w((lambda *s: torch.randn(*s, dtype=torch.bfloat16) * 0.05)(512) * 16.0),
    }

def reference(A_u, A_A_re, A_A_im, A_B_re, A_B_im, A_C_re, A_C_im, A_log_dt, A_Dskip, B_x, B_wqkv, B_wo, gate_w):
    def _A_ref(u, A_re, A_im, B_re, B_im, C_re, C_im, log_dt, Dskip):
        Bsz, L, D = u.shape
        dt = torch.exp(log_dt)[:, None]
        A = A_re + 1j * A_im
        Bc = B_re + 1j * B_im
        Cc = C_re + 1j * C_im
        logdA = dt * A
        dB = dt * Bc
        l = (lambda x, dt: x.to(dt))(torch.arange(L), A_re.dtype)
        P = torch.exp(logdA[:, :, None] * l[None, None, :])
        K = torch.einsum("dn,dnl,dn->dl", Cc, P, dB).real
        L2 = 2 * L
        Kp = _pad(K, ((0, 0), (0, L)))
        up = (lambda x, *d: x.permute(*d))(u, 0, 2, 1)
        up = _pad(up, ((0, 0), (0, 0), (0, L)))
        Kf = (lambda x, axes=(-2,-1): torch.fft.rfft2(x.float(), dim=axes))(Kp[:, None, :], axes=(-2, -1))
        Uf = (lambda x, axes=(-2,-1): torch.fft.rfft2(x.float(), dim=axes))(up[:, :, None, :], axes=(-2, -1))
        Yf = Uf * Kf[None, :, :, :]
        y = (lambda x, s, axes=(-2,-1): torch.fft.irfft2(x, s=s, dim=axes).to(torch.bfloat16))(Yf, (1, L2), axes=(-2, -1))[:, :, 0, :L]
        y = (lambda x, *d: x.permute(*d))(y, 0, 2, 1) + u * Dskip[None, None, :]
        return y

    def _B_ref(x, wqkv, wo):
        B, S, D = x.shape
        H = 32
        Dh = D // H
        qkv = (lambda x, *d: x.permute(*d))((x @ wqkv).reshape(B, S, 3, H, Dh), 2, 0, 3, 1, 4)
        q, k, v = qkv[0], qkv[1], qkv[2]
        scores = torch.einsum("bhqd,bhkd->bhqk", q, k) * (Dh ** -0.5)
        p = _softmax(scores, axis=-1)
        o = torch.einsum("bhqk,bhkd->bhqd", p, v)
        return (lambda x, *d: x.permute(*d))(o, 0, 2, 1, 3).reshape(B, S, D) @ wo

    x = A_u
    g = _sigmoid((x * gate_w).sum(-1, keepdims=True))
    a = _A_ref(x, A_A_re, A_A_im, A_B_re, A_B_im, A_C_re, A_C_im, A_log_dt, A_Dskip)
    b = _B_ref(x, B_wqkv, B_wo)
    return g * a + (1 - g) * b
```

```python
import re

TRANS = ("v_exp_", "v_log_", "v_rcp_", "v_rsq_", "v_sqrt_", "v_sin_", "v_cos_")

def regs_of(tok):
    tok = tok.strip()
    tok = tok.lstrip("-")
    m = re.fullmatch(r"(?:abs\(|\|)(.*?)(?:\)|\|)", tok)
    if m: tok = m.group(1)
    m = re.fullmatch(r"([vsa])(\d+)", tok)
    if m: return {(m.group(1), int(m.group(2)))}
    m = re.fullmatch(r"([vsa])\[(\d+):(\d+)\]", tok)
    if m: return {(m.group(1), i) for i in range(int(m.group(2)), int(m.group(3)) + 1)}
    if tok == "vcc": return {("s", "vcc_lo"), ("s", "vcc_hi")}
    if tok in ("vcc_lo", "vcc_hi"): return {("s", tok)}
    if tok == "exec": return {("s", "exec_lo"), ("s", "exec_hi")}
    if tok in ("exec_lo", "exec_hi"): return {("s", tok)}
    if tok == "m0": return {("s", "m0")}
    return set()

class Ins:
    def __init__(self, text):
        self.text = text
        t = text.split(";")[0].strip()
        parts = t.split(None, 1)
        self.op = parts[0]
        rest = parts[1] if len(parts) > 1 else ""
        toks = [x.strip() for x in rest.split(",")] if rest else []
        self.mods = ""
        ops = []
        for i, x in enumerate(toks):
            if "op_sel" in self.mods or "neg_" in self.mods:
                self.mods += "," + x; continue
            sp = x.split(None, 1)
            ops.append(sp[0])
            if len(sp) > 1: self.mods += " " + sp[1]
        self.ops = ops
        op = self.op
        R = [regs_of(o) for o in ops]
        U = lambda lst: set().union(*lst) if lst else set()
        self.kind = "other"; self.defs = set(); self.uses = set()
        self.A = self.B = self.C = set(); self.passes = 0; self.data = set()
        if op.startswith("v_mfma") or op.startswith("v_smfmac"):
            self.kind = "mfma"
            self.passes = 8 if "32x32" in op else 4
            self.defs = R[0]; self.A = R[1]; self.B = R[2]
            if op.startswith("v_smfmac"):
                self.C = R[0]; self.B = R[2] | R[3]
            else:
                self.C = R[3]
            self.uses = self.A | self.B | self.C
        elif op.startswith("v_"):
            self.kind = "valu"
            if op.startswith("v_permlane") or op.startswith("v_swap"):
                self.defs = R[0] | R[1]; self.uses = R[0] | R[1]
            elif op.startswith("v_add_co") or op.startswith("v_addc_co") or op.startswith("v_sub_co"):
                self.defs = R[0] | R[1]; self.uses = U(R[2:])
            else:
                self.defs = R[0]; self.uses = U(R[1:])
                if op.startswith(("v_fmac", "v_dot2c", "v_pk_fmac", "v_writelane")) or "UNUSED_PRESERVE" in self.mods:
                    self.uses |= R[0]
        elif op.startswith("ds_"):
            self.kind = "ds"
            if op.startswith("ds_read") or "_rtn" in op or op.startswith(("ds_bpermute", "ds_permute", "ds_swizzle")):
                self.defs = R[0]; self.uses = U(R[1:])
            else:
                self.uses = U(R)
        elif op.startswith("buffer_") or op.startswith("global_"):
            self.kind = "vmem"
            islds = " lds" in (" " + self.mods) or "_lds_" in op
            if "load" in op and not islds:
                self.defs = R[0]; self.uses = U(R[1:])
                if "d16" in op: self.uses |= R[0]
            elif "atomic" in op and "sc0" in self.mods and op.startswith("global_"):
                self.defs = R[0]; self.uses = U(R[1:])
            else:
                self.uses = U(R)
                if islds: self.uses |= {("s", "m0")}
                if "store" in op and ("x4" in op or "x3" in op):
                    self.data = R[0] if op.startswith("buffer_") else R[1]
            self.islds = islds
        elif op.startswith("s_"):
            self.kind = "salu"
            if op.startswith(("s_cmp", "s_waitcnt", "s_barrier", "s_nop", "s_branch", "s_cbranch", "s_setprio", "s_sleep", "s_endpgm", "s_bitcmp")):
                self.uses = U(R)
                if "vcc" in op: self.uses |= regs_of("vcc")
            else:
                self.defs = R[0] if R else set(); self.uses = U(R[1:])
                if "saveexec" in op: self.defs |= regs_of("exec")
        self.trans = op.startswith(TRANS)
        self.dl = op.startswith("v_dot")
        self.slots = 1
        if op == "s_nop": self.slots = int(ops[0], 0) + 1

def need(p, c):
    n = 0
    vd = {r for r in p.defs if r[0] in "va"}
    sd = {r for r in p.defs if r[0] == "s"}
    if p.kind == "valu":
        if c.kind == "mfma" and vd & c.uses: n = max(n, 3 if p.dl else 2)
        if c.kind == "valu":
            if p.trans and not c.trans and vd & c.uses: n = max(n, 1)
            if c.op.startswith(("v_readfirstlane", "v_readlane")) and vd & c.uses: n = max(n, 1)
            if (c.op.startswith("v_permlane") or "dpp" in c.op or "row_" in c.mods or "quad_perm" in c.mods) and vd & c.uses: n = max(n, 2)
            if sd & c.uses: n = max(n, 4 if c.op.startswith(("v_readlane", "v_writelane")) else 2)
            if p.dl and vd & (c.uses | c.defs) and c.op != p.op: n = max(n, 3)
            if ("sdwa" in p.op) and vd & (c.uses | c.defs): n = max(n, 1)
        if p.dl and c.kind in ("ds", "vmem") and vd & c.uses: n = max(n, 3)
        if c.kind == "vmem" and sd & c.uses: n = max(n, 5)
        if c.kind == "salu" and sd & c.uses: n = max(n, 2)
    if p.kind == "mfma":
        big = 12 if p.passes == 8 else 8
        if c.kind == "mfma":
            if vd & (c.A | c.B): n = max(n, big)
            if vd & c.C and not (vd == c.C and p.passes == c.passes): n = max(n, big - 2)
        elif c.kind in ("valu", "ds", "vmem"):
            if vd & (c.uses | c.defs): n = max(n, big)
            if c.kind == "valu" and p.C & c.defs: n = max(n, 7 if p.passes == 8 else 3)
    if p.kind == "salu" and ("s", "m0") in p.defs and c.kind == "vmem" and getattr(c, "islds", False): n = max(n, 1)
    if p.kind == "vmem" and p.data and p.data & c.defs: n = max(n, 2 if c.kind == "valu" else 1)
    return n

class Asm:
    def __init__(self):
        self.lines = []
        self.hist = []
        self.vm = []
        self.lg = []
        self.nops = 0
        self.uid = 0
    def raw(self, s): self.lines.append(s)
    def label(self, name):
        self.lines.append(name + ":")
    def newlabel(self, base):
        self.uid += 1
        return f"L_{base}_{self.uid}"
    def c(self, s): self.lines.append("    ; " + s)
    def __call__(self, text, tag=None):
        ins = Ins(text)
        dist = 0; pad = 0
        for p in reversed(self.hist):
            pad = max(pad, need(p, ins) - dist)
            dist += p.slots
            if dist >= 12: break
        if pad > 0:
            nop = Ins(f"s_nop {pad-1}")
            self.lines.append(f"    s_nop {pad-1}"); self.hist.append(nop); self.nops += 1
        self.lines.append("    " + text)
        self.hist.append(ins); self.hist = self.hist[-16:]
        if ins.kind == "vmem": self.vm.append(tag)
        if ins.kind == "ds": self.lg.append(tag)
        if ins.op == "s_waitcnt":
            m = re.search(r"vmcnt\((\d+)\)", text)
            if m:
                k = int(m.group(1)); self.vm = self.vm[len(self.vm) - k:] if k < len(self.vm) and k > 0 else ([] if k == 0 else self.vm)
            m = re.search(r"lgkmcnt\((\d+)\)", text)
            if m:
                k = int(m.group(1)); self.lg = self.lg[len(self.lg) - k:] if k < len(self.lg) and k > 0 else ([] if k == 0 else self.lg)
    def _cnt(self, q, tags):
        if not isinstance(tags, (list, tuple, set)): tags = [tags]
        idx = [i for i, t in enumerate(q) if t in tags]
        if not idx: return None
        return len(q) - 1 - max(idx)
    def wait(self, vm=None, lg=None):
        parts = []
        if vm is not None:
            n = self._cnt(self.vm, vm)
            if n is not None: parts.append(f"vmcnt({min(n, 63)})")
        if lg is not None:
            n = self._cnt(self.lg, lg)
            if n is not None: parts.append(f"lgkmcnt({min(n, 15)})")
        if parts: self("s_waitcnt " + " ".join(parts))
    def reset(self):
        self.hist = []; self.vm = []; self.lg = []
    def text(self): return "\n".join(self.lines) + "\n"

def vr(a, n=1): return f"v{a}" if n == 1 else f"v[{a}:{a+n-1}]"
def sr(a, n=1): return f"s{a}" if n == 1 else f"s[{a}:{a+n-1}]"
```

```python
import sys, struct, math
from asmlib import Asm, vr, sr

NAME = "gated_mix__ssm_conv_s4__mha_block__prompt_kernel"
def f32(x): return "0x%08x" % struct.unpack("<I", struct.pack("<f", x))[0]

XT_STRIDE = 4224
WS_XT = 0
WS_KV = 0x220000
WS_AT = 0x620000
WS_OF = 0x820000
WS_F2 = 0xA20000
WS_F3 = WS_F2 + 0x1000
WS_F4 = WS_F3 + 0x1000
WS_STAMP = 0xA30000
WS_SIZE = 0xA80000
L_RING = 0
SLOT = 24576
L_SSM = 98304
L_KX = 133120
L_QF = 145408
L_EX = 153600
L_MISC = 161792
L_GW = L_MISC
L_FL = L_MISC + 1024
FL_XT, FL_Q, FL_CV = 0, 4, 8
L_CONVX = 73728
L_OX0, L_OX1 = 65536, 90112
LDS_BYTES = 163840

sW, sHG, sTB, sROT, sID = 3, 4, 5, 6, 7
pX, pAre, pAim, pBre, pBim, pCre, pCim, pLdt, pDsk, pBx, pWqkv, pWo, pGate, pOut, pDbg, pWs = [16 + 2 * i for i in range(16)]
rX, rW, rWS, rWO, rOUT, rG = 48, 52, 56, 60, 64, 68
SPIN_MAX = 400000

class Cfg:
    mapping = 1
    P = 4
    stamps = False
    prio = (48, 999)
    force_fallback = False

def gen(cfg):
    A = Asm()
    def srd(r, ptr, size):
        A(f"s_mov_b32 s{r}, s{ptr}"); A(f"s_and_b32 s{r+1}, s{ptr+1}, 0xffff")
        A(f"s_mov_b32 s{r+2}, {hex(size)}"); A(f"s_mov_b32 s{r+3}, 0x20000")
    def stamp(i):
        if not cfg.stamps: return
        A(f"s_memrealtime s[{98}:{99}]")
        A("s_waitcnt lgkmcnt(0)")
        A(f"v_writelane_b32 v3, s98, {i}")
    def barrier(): A("s_barrier")
    def lds_signal(off, vtmp):
        A("s_mov_b64 exec, 1")
        A(f"v_mov_b32 v{vtmp}, {off}" if isinstance(off, str) else f"v_mov_b32 v{vtmp}, {L_FL + off}")
        A(f"v_mov_b32 v{vtmp+1}, 1")
        A(f"ds_add_u32 v{vtmp}, v{vtmp+1}")
        A("s_mov_b64 exec, -1")
    def lds_wait(off, count, vtmp):
        lp = A.newlabel("lw"); dn = A.newlabel("lwd")
        A(f"v_mov_b32 v{vtmp}, {off}" if isinstance(off, str) else f"v_mov_b32 v{vtmp}, {L_FL + off}")
        A(f"s_mov_b32 s8, {SPIN_MAX * 8}")
        A.label(lp)
        A(f"ds_read_b32 v{vtmp+1}, v{vtmp}")
        A("s_waitcnt lgkmcnt(0)")
        A(f"v_readfirstlane_b32 s9, v{vtmp+1}")
        A(f"s_cmp_ge_u32 s9, {count}")
        A(f"s_cbranch_scc1 {dn}")
        A("s_sleep 1")
        A("s_sub_u32 s8, s8, 1")
        A("s_cmp_lg_u32 s8, 0")
        A(f"s_cbranch_scc1 {lp}")
        A.label(dn)
    def poll(load, regs, expect_sgpr, sleep=2):
        lp = A.newlabel("pl"); dn = A.newlabel("pld")
        A(f"s_mov_b32 s8, {SPIN_MAX}")
        A.label(lp)
        A(load)
        A("s_waitcnt vmcnt(0)")
        r0 = regs[0]
        for r in regs[1:]: A(f"v_and_b32 v{r0}, v{r0}, v{r}")
        A(f"v_cmp_ne_u32 vcc, {expect_sgpr}, v{r0}")
        A(f"s_cbranch_vccz {dn}")
        if sleep: A(f"s_sleep {sleep}")
        A("s_sub_u32 s8, s8, 1")
        A("s_cmp_lg_u32 s8, 0")
        A(f"s_cbranch_scc1 {lp}")
        A.label(dn)
    def gflag(soff_sgpr, vtmp):
        A("s_mov_b64 exec, 1")
        A(f"v_mov_b32 v{vtmp}, 1")
        A(f"buffer_store_dword v{vtmp}, off, s[{rWS}:{rWS+3}], s{soff_sgpr} sc1")
        A("s_mov_b64 exec, -1")

    A.label(NAME)
    A("s_cmp_ge_u32 s2, 256")
    A("s_cbranch_scc1 L_end")
    A("s_load_dwordx16 s[16:31], s[0:1], 0")
    A("s_load_dwordx16 s[32:47], s[0:1], 64")
    A("v_lshrrev_b32 v1, 6, v0")
    A("v_and_b32 v0, 63, v0")
    A(f"v_readfirstlane_b32 s{sW}, v1")
    if cfg.stamps: A("v_mov_b32 v3, 0")
    xh = cfg.mapping; hb = 3 - xh
    A("s_and_b32 s8, s2, 7"); A("s_lshr_b32 s9, s2, 3")
    A(f"s_and_b32 s10, s8, {(1 << xh) - 1}"); A(f"s_lshl_b32 s10, s10, {hb}")
    A(f"s_and_b32 s11, s9, {(1 << hb) - 1}"); A(f"s_or_b32 s{sHG}, s10, s11")
    A(f"s_lshr_b32 s10, s8, {xh}"); A(f"s_lshl_b32 s10, s10, {5 - hb}")
    A(f"s_lshr_b32 s11, s9, {hb}"); A(f"s_or_b32 s{sTB}, s10, s11")
    A(f"s_add_u32 s{sROT}, s{sHG}, s{sTB}"); A(f"s_and_b32 s{sROT}, s{sROT}, 7")
    A(f"s_lshl_b32 s{sID}, s{sHG}, 5"); A(f"s_or_b32 s{sID}, s{sID}, s{sTB}")
    A(f"s_cmp_ge_u32 s{sW}, 4")
    A("s_cbranch_scc1 L_ssm")

    vX0, vX1, vW0, vW1 = 4, 5, 6, 7
    vAX, vAXh, vAW, vAWh = 8, 24, 16, 17
    vKst, vVst, vGA, vGacc, vG = 18, 19, 20, 21, 15
    aK, aV, WF, TMP, XF = 32, 48, 64, 96, 128
    sLW, sXb, sWb, sXo, sWk, sWv, sTT, sHP, sKC = 72, 73, 74, 75, 76, 77, 78, 79, 80
    A.c("DMA source offsets")
    A("v_lshrrev_b32 v1, 3, v0")
    A("v_lshrrev_b32 v2, 4, v0")
    A("v_and_b32 v12, 7, v0")
    A("v_xor_b32 v13, v12, v2")
    A("v_lshlrev_b32 v13, 4, v13")
    A(f"v_lshl_add_u32 v{vX0}, v1, 10, v13")
    A(f"v_xor_b32 v{vX1}, 64, v{vX0}")
    A(f"v_add_u32 v{vX1}, {8192 - 1024}, v{vX1}")
    A("v_and_b32 v2, 1, v2"); A("v_lshlrev_b32 v2, 2, v2"); A("v_xor_b32 v13, v12, v2"); A("v_lshlrev_b32 v13, 4, v13")
    A(f"v_mul_u32_u24 v{vW0}, 3072, v1"); A(f"v_add_u32 v{vW0}, v{vW0}, v13")
    A(f"v_add_u32 v{vW1}, {8 * 3072 - 1024}, v{vW0}")
    A(f"s_and_b32 s{sTT}, s{sW}, 1"); A(f"s_lshr_b32 s{sHP}, s{sW}, 1")
    A(f"s_lshl_b32 s{sLW}, s{sW}, 11")
    A(f"s_lshl_b32 s{sXb}, s{sTB}, 16"); A(f"s_lshl_b32 s8, s{sW}, 14"); A(f"s_add_u32 s{sXb}, s{sXb}, s8")
    A(f"s_mul_i32 s{sWb}, s{sW}, 49152"); A(f"s_lshl_b32 s8, s{sHG}, 7"); A(f"s_add_u32 s{sWb}, s{sWb}, s8")
    A("s_waitcnt lgkmcnt(0)")
    stamp(0)
    srd(rX, pX, 0x200000); srd(rW, pWqkv, 0x180000)

    def dma_piece(ldsoff, v0_, v1_, rs, so, tag):
        return [lambda: A(f"s_add_u32 m0, s{sLW}, {ldsoff}"),
                lambda: A(f"buffer_load_dwordx4 v{v0_}, s[{rs}:{rs+3}], s{so} offen lds", tag),
                lambda: A(f"buffer_load_dwordx4 v{v1_}, s[{rs}:{rs+3}], s{so} offen offset:1024 lds", tag)]
    def step_dmas(st):
        T = []
        slot = (st % 4) * SLOT
        def kc(i):
            T.append(lambda: A(f"s_add_u32 s{sKC}, s{sROT}, {i}"))
            T.append(lambda: A(f"s_and_b32 s{sKC}, s{sKC}, 7"))
        if st < 8:
            kc(st)
            T.append(lambda: A(f"s_lshl_b32 s{sXo}, s{sKC}, 7"))
            T.append(lambda: A(f"s_add_u32 s{sXo}, s{sXo}, s{sXb}"))
            T += dma_piece(slot, vX0, vX1, rX, sXo, ("st", st))
            T.append(lambda: A(f"s_mul_i32 s{sWk}, s{sKC}, 196608"))
            T.append(lambda: A(f"s_add_u32 s{sWk}, s{sWk}, s{sWb}"))
            T.append(lambda: A(f"s_add_u32 s{sWv}, s{sWk}, 2048"))
            T.append(lambda: A(f"s_add_u32 s{sWk}, s{sWk}, 1024"))
            T += dma_piece(slot + 8192, vW0, vW1, rW, sWk, ("st", st))
            T += dma_piece(slot + 16384, vW0, vW1, rW, sWv, ("st", st))
        else:
            for i in range(3 * (st - 8), min(8, 3 * (st - 8) + 3)):
                kc(i)
                T.append(lambda: A(f"s_mul_i32 s{sWk}, s{sKC}, 196608"))
                T.append(lambda: A(f"s_add_u32 s{sWk}, s{sWk}, s{sWb}"))
                T += dma_piece(8192 * i, vW0, vW1, rW, sWk, ("st", st))
        return T
    for st in range(4):
        for t in step_dmas(st): t()
    srd(rWS, pWs, WS_SIZE); srd(rWO, pWo, 0x80000); srd(rOUT, pOut, 0x200000)
    A.c("fragment read addresses")
    A("v_and_b32 v1, 31, v0"); A("v_lshrrev_b32 v2, 5, v0")
    A("v_bfe_u32 v12, v0, 1, 3"); A("v_xor_b32 v12, v12, v2"); A("v_lshlrev_b32 v12, 4, v12")
    A("v_lshl_add_u32 v12, v1, 7, v12")
    A(f"s_lshl_b32 s8, s{sTT}, 12")
    A(f"v_add_u32 v{vAX}, s8, v12")
    for ks in range(1, 4): A(f"v_xor_b32 v{vAX+ks}, {32*ks}, v{vAX}")
    for ks in range(4): A(f"v_add_u32 v{vAXh+ks}, {2*SLOT}, v{vAX+ks}")
    A("v_bfe_u32 v12, v0, 2, 2"); A("v_lshl_add_u32 v12, v2, 3, v12"); A("v_lshlrev_b32 v12, 7, v12")
    A("v_bfe_u32 v13, v0, 4, 1"); A("v_lshlrev_b32 v13, 1, v13"); A("v_bfe_u32 v14, v0, 1, 1"); A("v_or_b32 v13, v13, v14")
    A("v_bfe_u32 v14, v0, 3, 1"); A(f"v_xor_b32 v14, s{sHP}, v14"); A("v_lshl_or_b32 v13, v14, 2, v13")
    A("v_lshl_add_u32 v12, v13, 4, v12")
    A("v_and_b32 v13, 1, v0"); A(f"v_lshl_add_u32 v{vAW}, v13, 3, v12")
    A(f"v_add_u32 v{vAWh}, {2*SLOT}, v{vAW}")
    A("v_and_b32 v12, 0x33, v0"); A("v_bfe_u32 v13, v0, 2, 1"); A("v_lshl_or_b32 v12, v13, 3, v12")
    A("v_bfe_u32 v13, v0, 3, 1"); A("v_lshl_or_b32 v12, v13, 2, v12"); A(f"v_lshlrev_b32 v{vKst}, 4, v12")
    A("v_and_b32 v12, 15, v0"); A("v_lshl_add_u32 v12, v2, 4, v12"); A("v_lshlrev_b32 v12, 4, v12")
    A("v_bfe_u32 v13, v0, 4, 1"); A(f"v_lshl_add_u32 v{vVst}, v13, 17, v12")
    A(f"v_lshlrev_b32 v{vGA}, 4, v2"); A(f"v_add_u32 v{vGA}, {L_GW}, v{vGA}")
    A(f"v_mov_b32 v{vGacc}, 0")

    def xaddr(slot, ks):
        base = slot * SLOT
        return (vAX + ks, base) if slot < 2 else (vAXh + ks, base - 2 * SLOT)
    def waddr(off):
        return (vAW, off) if off < 2 * SLOT else (vAWh, off - 2 * SLOT)
    def rd_w(dst, off, ks, tag):
        v, o = waddr(off)
        for i in range(2): A(f"ds_read_b64_tr_b16 {vr(dst + 2*i, 2)}, v{v} offset:{o + (16*ks + 4*i) * 128}", tag)
    for st in range(8):
        A.c(f"K/V step {st}")
        A.wait(vm=[("st", st)])
        barrier()
        if st in (0, 7): stamp(1 if st == 0 else 2)
        slot = st % 4
        pend = step_dmas(st + 3) if st >= 1 else []
        def reads(ks):
            v, o = xaddr(slot, ks)
            A(f"ds_read_b128 {vr(XF + 16*st + 4*ks, 4)}, v{v} offset:{o}", ("r", ks))
            rd_w(WF + 8*ks, slot * SLOT + 8192, ks, ("r", ks))
            rd_w(WF + 8*ks + 4, slot * SLOT + 16384, ks, ("r", ks))
        def drain(n):
            for _ in range(n):
                if pend: pend.pop(0)()
        reads(0); reads(1)
        q = (len(pend) + 3) // 4
        for ks in range(4):
            drain(q)
            A.wait(lg=[("r", ks)])
            x = vr(XF + 16*st + 4*ks, 4)
            first = st == 0 and ks == 0
            A(f"v_mfma_f32_32x32x16_bf16 {vr(aK,16)}, {vr(WF+8*ks,4)}, {x}, {'0' if first else vr(aK,16)}")
            if ks + 2 < 4: reads(ks + 2)
            A(f"v_mfma_f32_32x32x16_bf16 {vr(aV,16)}, {x}, {vr(WF+8*ks+4,4)}, {'0' if first else vr(aV,16)}")
        drain(99)
    A.c("K/V epilogue")
    A(f"s_lshl_b32 s8, s{sHG}, 1"); A(f"s_add_u32 s8, s8, s{sHP}")
    A(f"s_lshl_b32 s9, s{sTB}, 1"); A(f"s_add_u32 s9, s9, s{sTT}")
    A("s_lshl_b32 s10, s8, 18"); A("s_lshl_b32 s11, s9, 11"); A("s_add_u32 s10, s10, s11")
    A(f"s_add_u32 s10, s10, {WS_KV}"); A("s_add_u32 s11, s10, 0x20000")
    A("s_lshl_b32 s12, s8, 8"); A("s_lshl_b32 s13, s9, 2"); A("s_add_u32 s12, s12, s13"); A(f"s_add_u32 s12, s12, {WS_F2}")
    for e in range(2):
        for i in range(4): A(f"v_cvt_pk_bf16_f32 v{TMP+4*e+i}, v{aK+8*e+2*i}, v{aK+8*e+2*i+1}")
        A(f"buffer_store_dwordx4 {vr(TMP+4*e,4)}, v{vKst}, s[{rWS}:{rWS+3}], s{10+e} offen sc1")
    for j in range(2):
        for i in range(4): A(f"v_cvt_pk_bf16_f32 v{TMP+8+4*j+i}, v{aV+8*j+2*i}, v{aV+8*j+2*i+1}")
        A(f"buffer_store_dwordx4 {vr(TMP+8+4*j,4)}, v{vVst}, s[{rWS}:{rWS+3}], s10 offen offset:{1024+512*j} sc1")
    stamp(3)
    A("s_waitcnt vmcnt(0)")
    gflag(12, 1)
    stamp(4)
    barrier()
    stamp(5)
    A.c("Q stage + gate")
    def qreads(g):
        i, ks = g >> 2, g & 3
        s = g % 4
        for ii in range(2): A(f"ds_read_b64_tr_b16 {vr(WF + 8*s + 2*ii, 2)}, v{vAW} offset:{8192*i + (16*ks + 4*ii) * 128}", ("q", g))
        A(f"ds_read_b128 {vr(WF + 8*s + 4, 4)}, v{vGA} offset:{128*i + 32*ks}", ("q", g))
    for g in range(3): qreads(g)
    for g in range(32):
        A.wait(lg=[("q", g)])
        s = g % 4
        x = XF + 4 * g
        A(f"v_mfma_f32_32x32x16_bf16 {vr(aK,16)}, {vr(WF+8*s,4)}, {vr(x,4)}, {'0' if g == 0 else vr(aK,16)}")
        if g + 3 < 32: qreads(g + 3)
        for i in range(4): A(f"v_dot2c_f32_bf16 v{vGacc}, v{x+i}, v{WF+8*s+4+i}")
    A.c("gate = sigmoid(z)")
    A(f"v_mov_b32 v1, v{vGacc}")
    A(f"v_permlane32_swap_b32 v1, v{vGacc}")
    A(f"v_add_f32 v1, v1, v{vGacc}")
    A(f"v_mul_f32 v1, {f32(-math.log2(math.e))}, v1")
    A("v_exp_f32 v1, v1")
    A("v_add_f32 v1, 1.0, v1")
    A(f"v_rcp_f32 v{vG}, v1")
    A(f"s_mov_b32 s8, {f32(0.25 * math.log2(math.e))}")
    for r in range(16): A(f"v_mul_f32 v{aK+r}, s8, v{aK+r}")
    for i in range(8): A(f"v_cvt_pk_bf16_f32 v{TMP+i}, v{aK+2*i}, v{aK+2*i+1}")
    A(f"s_lshl_b32 s8, s{sHP}, 12"); A(f"s_lshl_b32 s9, s{sTT}, 10"); A("s_add_u32 s8, s8, s9"); A(f"s_add_u32 s8, s8, {L_QF}")
    A("v_lshl_add_u32 v1, v0, 4, s8")
    A(f"ds_write_b128 v1, {vr(TMP,4)}")
    A(f"ds_write_b128 v1, {vr(TMP+4,4)} offset:2048")
    A("s_waitcnt lgkmcnt(0)")
    lds_signal(FL_Q, 1)
    stamp(6)
    A("s_branch L_attn")

    A.reset()
    A.label("L_ssm")
    sWp, sCHL, sNH, sCH = 72, 73, 74, 75
    A(f"s_sub_u32 s{sWp}, s{sW}, 4"); A(f"s_lshr_b32 s{sCHL}, s{sWp}, 1"); A(f"s_and_b32 s{sNH}, s{sWp}, 1")
    A.c("pull this kernel's code into L2 (each workgroup a slice)")
    A("s_getpc_b64 s[12:13]")
    A.label("L_pc")
    A(f"s_sub_u32 s12, s12, L_pc-{NAME}"); A("s_subb_u32 s13, s13, 0")
    A("s_lshr_b32 s9, s2, 3"); A("s_lshl_b32 s9, s9, 2"); A(f"s_add_u32 s9, s9, s{sWp}")
    A("v_lshl_add_u32 v1, v0, 7, s9"); A("v_lshlrev_b32 v1, 7, v1")
    A(f"v_min_u32 v1, L_end-{NAME}, v1")
    A("s_mov_b64 exec, 7")
    A("global_load_dword v2, v1, s[12:13]")
    A("s_mov_b64 exec, -1")
    A(f"s_lshl_b32 s{sCH}, s{sHG}, 6"); A(f"s_lshl_b32 s8, s{sTB}, 1"); A(f"s_add_u32 s{sCH}, s{sCH}, s8"); A(f"s_add_u32 s{sCH}, s{sCH}, s{sCHL}")
    A(f"s_lshl_b32 s8, s{sCH}, 8"); A(f"s_lshl_b32 s9, s{sNH}, 7"); A("s_add_u32 s8, s8, s9")
    A("v_lshl_add_u32 v1, v0, 1, s8")
    A(f"s_lshl_b32 s8, s{sCH}, 1"); A("v_mov_b32 v12, s8")
    pAr, pAi, pBr, pBi, pCr, pCi, pL, pD = 4, 5, 6, 7, 8, 9, 10, 11
    for r in range(4, 12): A(f"v_mov_b32 v{r}, 0")
    A("s_waitcnt lgkmcnt(0)")
    stamp(0)
    A(f"global_load_short_d16_hi v{pL}, v12, s[{pLdt}:{pLdt+1}]", "par")
    for r, p in ((pAr, pAre), (pAi, pAim), (pBr, pBre), (pBi, pBim), (pCr, pCre), (pCi, pCim)):
        A(f"global_load_short_d16_hi v{r}, v1, s[{p}:{p+1}]", "par")
    A(f"global_load_short_d16_hi v{pD}, v12, s[{pDsk}:{pDsk+1}]", "par")
    srd(rWS, pWs, WS_SIZE); srd(rWO, pWo, 0x80000); srd(rOUT, pOut, 0x200000); srd(rG, pGate, 1024)
    A.c("gate_w -> LDS in chunk arrival order (every SSM wave writes the same bytes)")
    A("v_lshrrev_b32 v1, 3, v0"); A(f"v_add_u32 v1, s{sROT}, v1"); A("v_and_b32 v1, 7, v1"); A("v_lshlrev_b32 v1, 7, v1")
    A("v_and_b32 v12, 7, v0"); A("v_lshl_add_u32 v1, v12, 4, v1")
    A(f"s_mov_b32 m0, {L_GW}")
    A(f"buffer_load_dwordx4 v1, s[{rG}:{rG+3}], 0 offen lds")
    for r in range(48, 52): A(f"v_mov_b32 v{r}, 0")
    A.c("zero the negative-index part of the K planes")
    A("v_and_b32 v1, 31, v0"); A("v_lshlrev_b32 v1, 4, v1"); A("v_lshrrev_b32 v12, 5, v0")
    A("v_mul_u32_u24 v12, 1536, v12"); A("v_add_u32 v1, v1, v12")
    A(f"s_mul_i32 s8, s{sWp}, 3072"); A(f"s_add_u32 s8, s8, {L_KX}"); A("v_add_u32 v1, s8, v1")
    A("ds_write_b128 v1, v[48:51]")
    A.c("parameters")
    A.wait(vm="par")
    L2E = math.log2(math.e)
    l2e_hi = struct.unpack("<f", struct.pack("<f", L2E))[0]; l2e_lo = L2E - l2e_hi
    A(f"s_mov_b32 s8, {f32(l2e_hi)}")
    A(f"v_mul_f32 v12, s8, v{pL}")
    A(f"v_fma_f32 v13, v{pL}, s8, -v12")
    A(f"v_fmac_f32 v13, {f32(l2e_lo)}, v{pL}")
    A("v_exp_f32 v12, v12")
    A(f"v_mul_f32 v13, {f32(math.log(2))}, v13")
    A("v_fmac_f32 v12, v12, v13")
    A("v_cvt_pk_bf16_f32 v12, v12, v12")
    A("v_lshlrev_b32 v12, 16, v12")
    A(f"v_mul_f32 v{pAr}, v12, v{pAr}"); A(f"v_mul_f32 v{pAi}, v12, v{pAi}")
    A(f"v_mul_f32 v{pBr}, v12, v{pBr}"); A(f"v_mul_f32 v{pBi}, v12, v{pBi}")
    A(f"v_mul_f32 v{pAr}, s8, v{pAr}")
    A(f"v_mul_f32 v{pAi}, 0.15915494, v{pAi}")
    def cmul(d, a, b):
        A(f"v_pk_mul_f32 {vr(d,2)}, {vr(a,2)}, {vr(b,2)} op_sel:[0,0] op_sel_hi:[1,0]")
        return lambda: A(f"v_pk_fma_f32 {vr(d,2)}, {vr(a,2)}, {vr(b,2)}, {vr(d,2)} op_sel:[1,1,0] op_sel_hi:[0,1,1] neg_lo:[0,1,0]")
    Z1, Z8, Z256, Z2, Z4, Z16, CC = 20, 22, 24, 26, 28, 30, 16
    cmul(CC, pCr, pBr)()
    for z, p in ((Z1, 1.0), (Z8, 8.0), (Z256, 256.0)):
        if p != 1.0:
            A(f"v_mul_f32 v12, {f32(p)}, v{pAr}"); A(f"v_mul_f32 v13, {f32(p)}, v{pAi}")
            A("v_exp_f32 v12, v12"); A("v_fract_f32 v13, v13")
        else:
            A(f"v_exp_f32 v12, v{pAr}"); A(f"v_fract_f32 v13, v{pAi}")
        A(f"v_cos_f32 v{z}, v13"); A(f"v_sin_f32 v{z+1}, v13")
        A(f"v_mul_f32 v{z}, v12, v{z}"); A(f"v_mul_f32 v{z+1}, v12, v{z+1}")
    cmul(Z2, Z1, Z1)(); cmul(Z16, Z8, Z8)(); cmul(Z4, Z2, Z2)()
    A.c("Dskip only on lane 0")
    A("v_cmp_eq_u32 vcc, 0, v0"); A(f"v_cndmask_b32 v{pD}, 0, v{pD}, vcc")
    vTW, vTR = 12, 13
    A(f"s_mul_i32 s76, s{sWp}, 8704"); A(f"s_add_u32 s76, s76, {L_SSM}")
    A(f"v_lshl_add_u32 v{vTW}, v0, 2, s76")
    A("v_and_b32 v1, 31, v0"); A("v_mul_u32_u24 v1, 272, v1"); A("v_lshrrev_b32 v2, 5, v0"); A("v_lshl_add_u32 v1, v2, 4, v1")
    A(f"v_add_u32 v{vTR}, s76, v1")
    A.c("x transpose addresses")
    A("v_lshrrev_b32 v1, 4, v0"); A("v_lshlrev_b32 v1, 4, v1"); A("v_bfe_u32 v2, v0, 2, 2"); A("v_add_u32 v1, v1, v2"); A("v_lshlrev_b32 v1, 7, v1")
    A("v_bfe_u32 v2, v0, 1, 1"); A("v_bfe_u32 v14, v0, 3, 1"); A("v_xor_b32 v2, v2, v14")
    A(f"s_lshl_b32 s8, s{sWp}, 1"); A("v_or_b32 v2, s8, v2"); A("v_lshl_add_u32 v1, v2, 4, v1")
    A("v_and_b32 v2, 1, v0"); A("v_lshl_add_u32 v32, v2, 3, v1")
    for i in range(1, 4): A(f"v_xor_b32 v{32+i}, {32*i}, v32")
    A(f"s_mul_i32 s8, s{sWp}, 2304"); A(f"s_add_u32 s8, s8, {L_QF}")
    A("v_and_b32 v1, 15, v0"); A("v_mul_u32_u24 v1, 144, v1"); A("v_lshrrev_b32 v2, 4, v0"); A("v_lshl_add_u32 v1, v2, 5, v1"); A("v_add_u32 v36, s8, v1")
    A("v_lshrrev_b32 v1, 3, v0"); A("v_and_b32 v2, 7, v0"); A("v_lshlrev_b32 v2, 4, v2")
    A("v_mul_u32_u24 v37, 144, v1"); A("v_add3_u32 v37, v37, v2, s8")
    A(f"v_mul_u32_u24 v38, {XT_STRIDE}, v1"); A("v_add_u32 v38, v38, v2")
    A(f"s_lshl_b32 s8, s{sROT}, 2"); A(f"s_add_u32 s8, s8, s{sWp}"); A(f"s_mul_i32 s14, s8, {16 * XT_STRIDE}")
    A(f"s_lshl_b32 s9, s{sTB}, 7"); A("s_add_u32 s14, s14, s9"); A(f"s_add_u32 s15, s14, {8 * XT_STRIDE}")
    A.c("clear this workgroup's hand-off words: lanes 0..3 of wave w' -> F2 / F3 / F4a / F4b")
    A(f"s_lshl_b32 s8, s{sHG}, 9"); A(f"s_lshl_b32 s9, s{sTB}, 3"); A("s_add_u32 s10, s8, s9"); A(f"s_add_u32 s10, s10, {WS_F2}")
    A(f"s_lshl_b32 s9, s{sTB}, 4"); A("s_add_u32 s11, s8, s9"); A(f"s_add_u32 s11, s11, {WS_F3}")
    A(f"s_lshl_b32 s8, s{sTB}, 8"); A(f"s_lshl_b32 s9, s{sHG}, 5"); A("s_add_u32 s12, s8, s9"); A(f"s_add_u32 s12, s12, {WS_F4}")
    lb = A.newlabel("noclr")
    A(f"s_cmp_lg_u32 s{sWp}, 0"); A(f"s_cbranch_scc1 {lb}")
    A("s_mov_b64 exec, 1")
    A(f"buffer_store_dwordx2 v[48:49], off, s[{rWS}:{rWS+3}], s10 sc1")
    A(f"buffer_store_dwordx2 v[48:49], off, s[{rWS}:{rWS+3}], s10 offset:256 sc1")
    A(f"buffer_store_dwordx4 v[48:51], off, s[{rWS}:{rWS+3}], s11 sc1")
    A(f"buffer_store_dwordx4 v[48:51], off, s[{rWS}:{rWS+3}], s12 sc1")
    A(f"buffer_store_dwordx4 v[48:51], off, s[{rWS}:{rWS+3}], s12 offset:16 sc1")
    A(f"v_mov_b32 v1, {L_FL}")
    A("ds_write_b128 v1, v[48:51]")
    A("s_mov_b64 exec, -1")
    A.label(lb)
    A("s_waitcnt lgkmcnt(0)")
    barrier()
    stamp(1)
    for i in range(4): A(f"ds_read_b64_tr_b16 {vr(40+2*i,2)}, v{32+i} offset:{512*i}")
    A("s_waitcnt lgkmcnt(0)")
    A("ds_write_b128 v36, v[40:43]"); A("ds_write_b128 v36, v[44:47] offset:16")
    A("s_waitcnt lgkmcnt(0)")
    A("ds_read_b128 v[40:43], v37"); A(f"ds_read_b128 v[44:47], v37 offset:{8*144}")
    A("s_waitcnt lgkmcnt(0)")
    A(f"buffer_store_dwordx4 v[40:43], v38, s[{rWS}:{rWS+3}], s14 offen offset:128 sc1")
    A(f"buffer_store_dwordx4 v[44:47], v38, s[{rWS}:{rWS+3}], s15 offen offset:128 sc1")
    lb = A.newlabel("nopad")
    A(f"s_cmp_lg_u32 s{sTB}, 0"); A(f"s_cbranch_scc1 {lb}")
    A(f"buffer_store_dwordx4 v[48:51], v38, s[{rWS}:{rWS+3}], s14 offen sc1")
    A(f"buffer_store_dwordx4 v[48:51], v38, s[{rWS}:{rWS+3}], s15 offen sc1")
    A.label(lb)
    barrier()
    A.c("Y table: z8^m")
    def put(src, rows, neg):
        put.k = (put.k + 1) % 4
        t = 60 + put.k
        A(f"v_cvt_pk_bf16_f32 v{t}, v{src}, {'-' if neg else ''}v{src+1}")
        for r in rows: A(f"ds_write_b32 v{vTW}, v{t} offset:{272*r}")
    put.k = 0
    Ya = [52, 54]; Yb = [56, 58]
    A("v_mov_b32 v60, 0x3f80"); A(f"ds_write_b32 v{vTW}, v60")
    put(Z8, [1], False); put(Z16, [2], False)
    cmul(Yb[0], Z8, Z16)(); put(Yb[0], [3], False)
    ca, cb = Z16, Yb[0]; ia, ib = 0, 1
    for m in range(4, 32, 2):
        da, db = Ya[ia], Yb[ib]
        f1 = cmul(da, ca, Z16); f2 = cmul(db, cb, Z16); f1(); f2()
        put(da, [m], False); put(db, [m + 1], False)
        ca, cb = da, db; ia ^= 1; ib ^= 1
        if m == 16: barrier()
    A.c("stage-1 signal: last SSM wave to drain sets this workgroup's byte")
    A("s_waitcnt vmcnt(0)")
    A("s_mov_b64 exec, 1")
    A(f"v_mov_b32 v1, {L_FL + FL_XT}"); A("v_mov_b32 v2, 1")
    A("ds_add_rtn_u32 v14, v1, v2")
    A("s_waitcnt lgkmcnt(0)")
    A("v_readfirstlane_b32 s8, v14")
    lb = A.newlabel("nosig")
    A("s_cmp_lg_u32 s8, 3"); A(f"s_cbranch_scc1 {lb}")
    A(f"v_mov_b32 v1, s{sID}")
    A(f"global_store_byte v1, v2, s[{pDbg}:{pDbg+1}] sc1")
    A.label(lb)
    A("s_mov_b64 exec, -1")
    stamp(2)
    barrier()
    YF = 64
    for ks in range(8): A(f"ds_read_b128 {vr(YF+4*ks,4)}, v{vTR} offset:{32*ks}")
    A.c("X table")
    rho = lambda h2, r: 8 * (r >> 2) + 4 * h2 + (r & 3)
    Wa = [44, 46]; T0, T1 = 40, 42
    f1 = cmul(Ya[0], CC, Z1); f2 = cmul(Wa[0], CC, Z256); f1(); f2()
    A("s_waitcnt lgkmcnt(0)")
    put(CC, [rho(0, 0)], True); put(Ya[0], [rho(0, 1)], True); put(Wa[0], [rho(1, 0), rho(1, 1)], True)
    xa = Ya[0]; xi = 1
    def xnext(r):
        nonlocal xa, xi
        d = Ya[xi]; f = cmul(d, xa, Z1); xa = d; xi ^= 1
        return f, d, [rho(0, r)]
    def pair(j1, j2):
        (f1, d1, r1), (f2, d2, r2) = j1(), j2()
        f1(); f2(); put(d1, r1, True); put(d2, r2, True)
    job = lambda d, a, b, rows: (lambda: (cmul(d, a, b), d, rows))
    pair(lambda: xnext(2), job(T0, Wa[0], Z2, [rho(1, 2)]))
    pair(lambda: xnext(3), job(T1, Wa[0], Z4, [rho(1, 3), rho(1, 4), rho(1, 5)]))
    pair(lambda: xnext(4), job(T0, T1, Z2, [rho(1, 6)]))
    pair(lambda: xnext(5), job(T1, Wa[0], Z8, [rho(1, 7)]))
    pair(lambda: xnext(6), job(Wa[1], Wa[0], Z256, [rho(0, 8)]))
    barrier()
    pair(lambda: xnext(7), job(T0, Wa[1], Z4, [rho(0, 9)]))
    pair(job(T1, Wa[1], Z8, [rho(0, 10)]), job(Wa[0], Wa[1], Z256, [rho(1, 8)]))
    pair(job(T0, Wa[0], Z4, [rho(1, 9)]), job(Wa[1], Wa[0], Z256, [rho(0, 11)]))
    pair(job(T1, Wa[0], Z8, [rho(1, 10)]), job(T0, Wa[1], Z8, [rho(0, 12)]))
    f = cmul(Wa[0], Wa[1], Z256); f(); put(Wa[0], [rho(1, 11)], True)
    pair(job(T0, Wa[0], Z8, [rho(1, 12)]), job(Wa[1], Wa[0], Z256, [rho(0, 13)]))
    pair(job(T1, Wa[1], Z8, [rho(0, 14)]), job(Wa[0], Wa[1], Z256, [rho(1, 13)]))
    f = cmul(T0, Wa[0], Z8); f(); put(T0, [rho(1, 14)], True)
    barrier()
    XFr, KA = 96, 32
    A("s_waitcnt lgkmcnt(0)")
    for ks in range(8): A(f"ds_read_b128 {vr(XFr+4*ks,4)}, v{vTR} offset:{32*ks}", ("x", ks))
    A(f"s_lshl_b32 s8, s{sWp}, 11"); A(f"s_add_u32 s8, s8, {L_EX}"); A("s_xor_b32 s9, s8, 2048") if (L_EX & 2048) == 0 else None
    if L_EX & 2048:
        A(f"s_xor_b32 s9, s{sWp}, 1"); A("s_lshl_b32 s9, s9, 11"); A(f"s_add_u32 s9, s9, {L_EX}")
    A("v_lshl_add_u32 v1, v0, 4, s8"); A("v_lshl_add_u32 v2, v0, 4, s9")
    for ks in range(8):
        A.wait(lg=[("x", ks)])
        A(f"v_mfma_f32_32x32x16_bf16 {vr(KA,16)}, {vr(XFr+4*ks,4)}, {vr(YF+4*ks,4)}, {'0' if ks == 0 else vr(KA,16)}")
    A.c("K plane write address")
    A("v_and_b32 v14, 3, v0"); A("v_mul_u32_u24 v14, 1536, v14"); A("v_lshrrev_b32 v52, 2, v0"); A("v_lshl_add_u32 v14, v52, 4, v14")
    A(f"s_mul_i32 s77, s{sCHL}, 6144"); A(f"s_add_u32 s77, s77, {L_KX}"); A("v_add_u32 v14, s77, v14")
    A("s_mov_b32 s10, 0xaaaaaaaa"); A("s_mov_b32 s11, 0xaaaaaaaa")
    A("s_nop 3")
    l1 = A.newlabel("nh1"); l2 = A.newlabel("nhd")
    A(f"s_cmp_lg_u32 s{sNH}, 0"); A(f"s_cbranch_scc1 {l1}")
    hist = list(A.hist)
    A(f"ds_write_b128 v1, {vr(KA+8,4)}"); A(f"ds_write_b128 v1, {vr(KA+12,4)} offset:1024")
    A("s_waitcnt lgkmcnt(0)")
    barrier()
    A("ds_read_b128 v[52:55], v2"); A("ds_read_b128 v[56:59], v2 offset:1024")
    A(f"v_add_f32 v{KA}, v{KA}, v{pD}")
    A("s_waitcnt lgkmcnt(0)")
    for r in range(8): A(f"v_add_f32 v{KA+r}, v{KA+r}, v{52+r}")
    for i in range(4): A(f"v_cvt_pk_bf16_f32 v{52+i}, v{KA+7-2*i}, v{KA+6-2*i}")
    A("ds_write_b128 v14, v[52:55] offset:512")
    A(f"s_branch {l2}")
    A.label(l1); A.hist = hist
    A(f"ds_write_b128 v1, {vr(KA,4)}"); A(f"ds_write_b128 v1, {vr(KA+4,4)} offset:1024")
    A("s_waitcnt lgkmcnt(0)")
    barrier()
    A("ds_read_b128 v[52:55], v2"); A("ds_read_b128 v[56:59], v2 offset:1024")
    A("s_waitcnt lgkmcnt(0)")
    for r in range(7): A(f"v_add_f32 v{KA+8+r}, v{KA+8+r}, v{52+r}")
    a, b, c = KA + 8, KA + 9, KA + 10
    for i, (p, q_) in enumerate(((c, c), (b, b), (b, a), (a, a))): A(f"v_cvt_pk_bf16_f32 v{52+i}, v{p}, v{q_}")
    A(f"ds_write_b128 v14, v[52:55] offset:{512 + 2*128}")
    for e in range(2):
        a, b = KA + 11 + 2 * e, KA + 12 + 2 * e
        t = 56 + 4 * e
        A(f"v_cndmask_b32 v{KA}, v{a}, v{b}, s[10:11]")
        for i, (p, q_) in enumerate(((b, b), (b, KA), (a, a), (a, a))): A(f"v_cvt_pk_bf16_f32 v{t+i}, v{p}, v{q_}")
        A(f"ds_write_b128 v14, {vr(t,4)} offset:{512 + (4 + 2*e)*128}")
    A.label(l2)
    barrier()
    stamp(3)
    A.c("wait for every workgroup's stage-1 byte, then fetch the shifted copies of u")
    A("v_lshlrev_b32 v1, 2, v0")
    A("s_mov_b32 s10, 0x01010101")
    poll(f"global_load_dword v2, v1, s[{pDbg}:{pDbg+1}] sc1", [2], "s10", sleep=4)
    stamp(4)
    A("v_lshlrev_b32 v1, 4, v0")
    A(f"s_mul_i32 s10, s{sCH}, {XT_STRIDE}"); A(f"s_lshl_b32 s9, s{sNH}, 2"); A("s_sub_u32 s10, s10, s9"); A(f"s_add_u32 s10, s10, {WS_XT + 128 - 56}")
    A(f"s_mul_i32 s11, s{sWp}, 8320"); A(f"s_add_u32 s11, s11, {L_SSM}")
    for e in range(2):
        A(f"s_add_u32 m0, s11, {4160*e}")
        A(f"s_sub_u32 s12, s10, {2*e}")
        for i in range(4): A(f"buffer_load_dwordx4 v1, s[{rWS}:{rWS+3}], s12 offen offset:{1024*i} sc1 lds")
    A("s_mov_b64 exec, 15")
    for e in range(2):
        A(f"s_add_u32 m0, s11, {4160*e + 4096}")
        A(f"s_add_u32 s12, s10, {4096 - 2*e}")
        A(f"buffer_load_dwordx4 v1, s[{rWS}:{rWS+3}], s12 offen sc1 lds")
    A("s_mov_b64 exec, -1")
    A.c("conv addresses")
    vUA, vKB = 12, 13
    A("v_and_b32 v1, 3, v0"); A("v_sub_u32 v1, 3, v1"); A("v_mul_u32_u24 v1, 4160, v1")
    A("v_bfe_u32 v2, v0, 2, 1"); A("v_lshl_add_u32 v1, v2, 5, v1")
    A("v_bfe_u32 v2, v0, 3, 2"); A("v_lshl_add_u32 v1, v2, 3, v1")
    A("v_lshrrev_b32 v2, 5, v0"); A("v_lshl_add_u32 v1, v2, 4, v1")
    A(f"s_mul_i32 s8, s{sCHL}, {4*4160}"); A(f"s_lshl_b32 s9, s{sNH}, 10"); A("s_add_u32 s8, s8, s9"); A(f"s_add_u32 s8, s8, {L_SSM}")
    A(f"v_add_u32 v{vUA}, s8, v1")
    A("v_sub_u32 v2, 1, v2"); A("v_mul_u32_u24 v2, 1536, v2"); A("v_and_b32 v1, 31, v0"); A("v_lshl_add_u32 v1, v1, 4, v2")
    A(f"s_lshl_b32 s9, s{sNH}, 8"); A("s_sub_u32 s8, s77, s9")
    A(f"v_add_u32 v{vKB}, s8, v1")
    A("s_waitcnt vmcnt(0) lgkmcnt(0)")
    barrier()
    stamp(5)
    C0, C1, CF = 32, 48, 64
    def creads(sg):
        b = CF + 16 * (sg % 3)
        ko = (3072 if sg % 2 == 0 else 0) + (32 - (sg >> 1)) * 16
        A(f"ds_read_b64 {vr(b,2)}, v{vUA} offset:{32*sg}", ("c", sg)); A(f"ds_read_b64 {vr(b+2,2)}, v{vUA} offset:{32*sg+8}", ("c", sg))
        A(f"ds_read_b128 {vr(b+8,4)}, v{vKB} offset:{ko+512}", ("c", sg))
        A(f"ds_read_b128 {vr(b+12,4)}, v{vKB} offset:{ko}", ("c", sg))
        A(f"ds_read_b64 {vr(b+4,2)}, v{vUA} offset:{2048+32*sg}", ("c", sg)); A(f"ds_read_b64 {vr(b+6,2)}, v{vUA} offset:{2048+32*sg+8}", ("c", sg))
    A("s_setprio 2")
    creads(0); creads(1)
    for sg in range(32):
        b = CF + 16 * (sg % 3)
        A.wait(lg=[("c", sg)])
        A(f"v_mfma_f32_32x32x16_bf16 {vr(C1,16)}, {vr(b,4)}, {vr(b+8,4)}, {'0' if sg == 0 else vr(C1,16)}")
        if sg + 2 < 32: creads(sg + 2)
        A(f"v_mfma_f32_32x32x16_bf16 {vr(C0,16)}, {vr(b,4)}, {vr(b+12,4)}, {'0' if sg == 0 else vr(C0,16)}")
        A(f"v_mfma_f32_32x32x16_bf16 {vr(C1,16)}, {vr(b+4,4)}, {vr(b+12,4)}, {vr(C1,16)}")
    A.c("pair exchange; sh=0 keeps acc0, sh=1 keeps acc1")
    A(f"s_lshl_b32 s8, s{sWp}, 12"); A(f"s_add_u32 s10, s8, {L_CONVX}"); A("s_xor_b32 s8, s8, 4096"); A(f"s_add_u32 s11, s8, {L_CONVX}")
    A("v_lshl_add_u32 v12, v0, 4, s10"); A("v_lshl_add_u32 v13, v0, 4, s11")
    A("v_and_b32 v1, 31, v0"); A("v_lshlrev_b32 v1, 6, v1"); A("v_lshrrev_b32 v2, 5, v0"); A("v_lshl_add_u32 v1, v2, 5, v1"); A("v_add_u32 v14, s11, v1")
    A(f"s_lshl_b32 s12, s{sCHL}, 2"); A(f"s_add_u32 s12, s12, {L_FL + FL_CV}")
    l1 = A.newlabel("sh1"); l2 = A.newlabel("shd")
    A(f"s_cmp_lg_u32 s{sNH}, 0"); A(f"s_cbranch_scc1 {l1}")
    hist = list(A.hist)
    for i in range(4): A(f"ds_write_b128 v12, {vr(C1+4*i,4)} offset:{1024*i}")
    A(f"s_branch {l2}")
    A.label(l1); A.hist = hist
    for i in range(4): A(f"ds_write_b128 v12, {vr(C0+4*i,4)} offset:{1024*i}")
    A("s_waitcnt lgkmcnt(0)")
    for r in range(16): A(f"v_mov_b32 v{C0+r}, v{C1+r}")
    A.label(l2)
    A("s_waitcnt lgkmcnt(0)")
    lds_signal("s12", 1)
    lds_wait("s12", 2, 1)
    for i in range(4): A(f"ds_read_b128 {vr(CF+4*i,4)}, v13 offset:{1024*i}")
    A(f"s_lshl_b32 s10, s{sCH}, 12"); A(f"s_lshl_b32 s9, s{sNH}, 11"); A("s_add_u32 s10, s10, s9"); A(f"s_add_u32 s10, s10, {WS_AT}")
    A(f"s_lshl_b32 s12, s{sID}, 4"); A(f"s_lshl_b32 s9, s{sWp}, 2"); A("s_add_u32 s12, s12, s9"); A(f"s_add_u32 s12, s12, {WS_F3}")
    A("s_waitcnt lgkmcnt(0)")
    for r in range(16): A(f"v_add_f32 v{C0+r}, v{C0+r}, v{CF+r}")
    for i in range(8): A(f"v_cvt_pk_bf16_f32 v{CF+i}, v{C0+2*i}, v{C0+2*i+1}")
    A(f"ds_write_b128 v14, {vr(CF,4)}"); A(f"ds_write_b128 v14, {vr(CF+4,4)} offset:16")
    A("s_waitcnt lgkmcnt(0)")
    A(f"ds_read_b128 {vr(CF,4)}, v13"); A(f"ds_read_b128 {vr(CF+4,4)}, v13 offset:1024")
    A("v_lshlrev_b32 v1, 4, v0")
    A("s_waitcnt lgkmcnt(0)")
    A(f"buffer_store_dwordx4 {vr(CF,4)}, v1, s[{rWS}:{rWS+3}], s10 offen sc1")
    A(f"buffer_store_dwordx4 {vr(CF+4,4)}, v1, s[{rWS}:{rWS+3}], s10 offen offset:1024 sc1")
    A("s_waitcnt vmcnt(0)")
    gflag(12, 1)
    stamp(6)

    A.label("L_attn")
    A.reset()
    P = cfg.P
    sA, sKH, sKV, sKV0, sWOo, sWOl, sVM = 81, 82, 83, 84, 85, 86, 88
    vIdx, vKo, vVo, vWO = 12, 13, 14, 2
    S = {"A": 16, "B": 32}; O = {"A": 48, "B": 64}; Q = {"A": 4, "B": 8}
    ST = 80
    Kr = lambda s: vr(ST + 12 * s, 4)
    Vr = lambda s, j: vr(ST + 12 * s + 4 + 4 * j, 4)
    A(f"s_and_b32 s{sA}, s{sW}, 3"); A(f"s_lshr_b32 s{sKH}, s{sW}, 2")
    A(f"s_lshl_b32 s10, s{sHG}, 2"); A(f"s_add_u32 s10, s10, s{sA}")
    A(f"s_lshl_b32 s{sKV0}, s10, 17"); A(f"s_add_u32 s{sKV0}, s{sKV0}, {WS_KV}")
    A(f"s_lshl_b32 s11, s{sKH}, 16"); A(f"s_add_u32 s{sKV}, s{sKV0}, s11")
    A("s_lshr_b32 s10, s10, 1"); A("s_lshl_b32 s10, s10, 8"); A(f"s_add_u32 s10, s10, {WS_F2}")
    A(f"s_lshl_b32 s{sWOo}, s{sW}, 13"); A(f"s_lshl_b32 s11, s{sHG}, 7"); A(f"s_add_u32 s{sWOo}, s{sWOo}, s11")
    A(f"s_lshl_b32 s{sWOl}, s{sW}, 10")
    A(f"s_mov_b32 s{sVM}, 0xffff"); A(f"s_mov_b32 s{sVM+1}, 0xffff")
    A(f"v_lshlrev_b32 v{vKo}, 4, v0")
    A("v_and_b32 v1, 15, v0"); A("v_lshrrev_b32 v2, 5, v0"); A("v_lshl_add_u32 v1, v2, 4, v1"); A(f"v_lshlrev_b32 v{vVo}, 4, v1")
    A(f"v_mov_b32 v{vIdx}, 0xdddddddd")
    for r in range(48, 80): A(f"v_mov_b32 v{r}, 0")
    A.c("rows 16 and 20 of the V operand are ones (row sum), the other spare rows zero")
    A("v_and_b32 v1, 27, v0"); A("v_cmp_eq_u32 vcc, 16, v1"); A("v_mov_b32 v1, 0x3f803f80"); A("v_cndmask_b32 v1, 0, v1, vcc")
    for s in range(P):
        for r in range(4, 12): A(f"v_mov_b32 v{ST+12*s+r}, v1")
    lds_wait(FL_Q, 4, 1)
    A(f"s_lshl_b32 s11, s{sA}, 11"); A(f"s_add_u32 s11, s11, {L_QF}"); A(f"v_add_u32 v1, s11, v{vKo}")
    A(f"ds_read_b128 {vr(Q['A'],4)}, v1"); A(f"ds_read_b128 {vr(Q['B'],4)}, v1 offset:1024")
    stamp(7)
    A("v_lshlrev_b32 v1, 2, v0")
    poll(f"buffer_load_dword v2, v1, s[{rWS}:{rWS+3}], s10 offen sc1", [2], "1", sleep=1)
    stamp(8)
    def load_tile(i):
        s = i % P; off = (i & 1) * 2048
        T = [lambda: A(f"buffer_load_dwordx4 {Kr(s)}, v{vKo}, s[{rWS}:{rWS+3}], s{sKV} offen offset:{off} sc1", ("k", i))]
        def vl():
            A(f"s_mov_b64 exec, s[{sVM}:{sVM+1}]")
            for j in range(2): A(f"buffer_load_dwordx4 {Vr(s,j)}, v{vVo}, s[{rWS}:{rWS+3}], s{sKV} offen offset:{off+1024+512*j} sc1", ("v", i))
            A("s_mov_b64 exec, -1")
            if i & 1: A(f"s_add_u32 s{sKV}, s{sKV}, 4096")
        T.append(vl)
        return T
    for i in range(P):
        for t in load_tile(i): t()
    A("v_lshrrev_b32 v1, 3, v0"); A("v_lshlrev_b32 v1, 10, v1"); A("v_bfe_u32 v2, v0, 4, 1"); A("v_lshlrev_b32 v2, 2, v2")
    A("v_and_b32 v16, 7, v0"); A("v_xor_b32 v2, v2, v16"); A(f"v_lshl_add_u32 v{vWO}, v2, 4, v1")
    A("s_setprio 1")
    def qk(t, i): A(f"v_mfma_f32_32x32x16_bf16 {vr(S[t],16)}, {Kr(i % P)}, {vr(Q[t],4)}, 0")
    def sm(t, i, j): A(f"v_smfmac_f32_32x32x32_bf16 {vr(O[t],16)}, {Vr(i % P, j)}, {vr(S[t]+8*j,8)}, v{vIdx}")
    def ex(t, a, b):
        for r in range(a, b): A(f"v_exp_f32 v{S[t]+r}, v{S[t]+r}")
    def prio_point(n):
        for kh in range(2):
            if cfg.prio[kh] == n:
                lb = A.newlabel("pr")
                A(f"s_cmp_lg_u32 s{sKH}, {kh}"); A(f"s_cbranch_scc1 {lb}"); A("s_setprio 0"); A.label(lb)
    A("s_waitcnt lgkmcnt(0)")
    A.wait(vm=[("k", 0)])
    stamp(9)
    qk("A", 0)
    NT = 32
    for i in range(NT):
        nl = load_tile(i - 1 + P) if (i >= 1 and i - 1 + P < NT) else [lambda: None, lambda: None]
        prio_point(2 * i)
        ex("A", 0, 2)
        if i >= 1: sm("B", i - 1, 1)
        ex("A", 2, 3); nl[0]()
        ex("A", 3, 4); nl[1]()
        ex("A", 4, 5)
        qk("B", i)
        ex("A", 5, 10)
        A.wait(vm=[("v", i), ("k", i + 1)])
        sm("A", i, 0)
        ex("A", 10, 16)
        prio_point(2 * i + 1)
        ex("B", 0, 2)
        sm("A", i, 1)
        ex("B", 2, 3)
        if 2 <= i < 26 and (i - 2) % 3 == 0:
            rho_ = (i - 2) // 3
            A(f"s_add_u32 m0, s{sWOl}, {8192*rho_}")
            ex("B", 3, 4)
            A(f"buffer_load_dwordx4 v{vWO}, s[{rWO}:{rWO+3}], s{sWOo} offen lds", "wo")
            A(f"s_add_u32 s{sWOo}, s{sWOo}, 0x10000")
            ex("B", 4, 5)
        else:
            ex("B", 3, 5)
        if i + 1 < NT: qk("A", i + 1)
        ex("B", 5, 10)
        sm("B", i, 0)
        ex("B", 10, 16)
    sm("B", NT - 1, 1)
    A("s_setprio 0")
    stamp(10)
    A.c("pair exchange: kh=0 finishes q-tile A, kh=1 q-tile B")
    A(f"s_lshl_b32 s8, s{sA}, 11"); A(f"s_add_u32 s10, s8, {L_OX0}"); A(f"s_add_u32 s11, s8, {L_OX1}")
    A(f"s_lshl_b32 s12, s{sW}, 8"); A(f"s_xor_b32 s13, s12, 1024"); A(f"s_add_u32 s12, s12, {L_EX}"); A(f"s_add_u32 s13, s13, {L_EX}")
    A("v_lshl_add_u32 v18, v0, 2, s12"); A("v_lshl_add_u32 v19, v0, 2, s13")
    A(f"v_add_u32 v16, s10, v{vKo}"); A(f"v_add_u32 v17, s11, v{vKo}")
    l1 = A.newlabel("kh1"); l2 = A.newlabel("khd")
    A(f"s_cmp_lg_u32 s{sKH}, 0"); A(f"s_cbranch_scc1 {l1}")
    hist = list(A.hist)
    A(f"ds_write_b128 v16, {vr(O['B'],4)}"); A(f"ds_write_b128 v16, {vr(O['B']+4,4)} offset:1024"); A(f"ds_write_b32 v18, v{O['B']+8}")
    A(f"s_branch {l2}")
    A.label(l1); A.hist = hist
    A(f"ds_write_b128 v17, {vr(O['A'],4)}"); A(f"ds_write_b128 v17, {vr(O['A']+4,4)} offset:1024"); A(f"ds_write_b32 v18, v{O['A']+8}")
    A("s_waitcnt lgkmcnt(0)")
    for r in range(9): A(f"v_mov_b32 v{O['A']+r}, v{O['B']+r}")
    for r in range(4): A(f"v_mov_b32 v{Q['A']+r}, v{Q['B']+r}")
    A("v_mov_b32 v17, v16")
    A.label(l2)
    A("s_waitcnt vmcnt(0) lgkmcnt(0)")
    barrier()
    OA = O["A"]
    A("ds_read_b128 v[20:23], v17"); A("ds_read_b128 v[24:27], v17 offset:1024"); A("ds_read_b32 v28, v19")
    A(f"s_lshl_b32 s10, s{sHG}, 3"); A(f"s_lshl_b32 s11, s{sA}, 1"); A("s_add_u32 s10, s10, s11"); A(f"s_add_u32 s10, s10, s{sKH}")
    A(f"s_lshl_b32 s11, s{sTB}, 6"); A("s_add_u32 s10, s10, s11")
    A("s_lshl_b32 s14, s10, 10"); A(f"s_add_u32 s14, s14, {WS_OF}")
    A("s_lshl_b32 s15, s10, 2"); A(f"s_add_u32 s15, s15, {WS_F4}")
    A("s_waitcnt lgkmcnt(0)")
    for r in range(9): A(f"v_add_f32 v{OA+r}, v{OA+r}, v{20+r}")
    A.c("the un-shifted exponentials are exact only while the row sum is far from overflow / underflow; else redo with the true row max")
    A(f"v_max3_f32 v20, abs(v{OA}), abs(v{OA+1}), abs(v{OA+2})")
    A(f"v_max3_f32 v21, abs(v{OA+3}), abs(v{OA+4}), abs(v{OA+5})")
    A(f"v_max3_f32 v20, abs(v{OA+6}), abs(v{OA+7}), v20")
    A("v_max_f32 v20, v20, v21")
    A(f"s_mov_b32 s8, {f32(2.0**-24)}"); A(f"s_mov_b32 s9, {f32(2.0**48)}"); A(f"s_mov_b32 s10, {f32(2.0**120)}")
    A(f"v_cmp_nle_f32 s[12:13], s8, v{OA+8}")
    A(f"v_cmp_nge_f32 vcc, s9, v{OA+8}")
    A("s_or_b64 s[12:13], s[12:13], vcc")
    A("v_cmp_nge_f32 vcc, s10, v20")
    A("s_or_b64 s[12:13], s[12:13], vcc")
    if cfg.force_fallback: A("s_branch L_fallback")
    A("s_cbranch_scc1 L_fallback")
    A.label("L_norm")
    A(f"v_rcp_f32 v20, v{OA+8}")
    for r in range(8): A(f"v_mul_f32 v{OA+r}, v20, v{OA+r}")
    for i in range(4): A(f"v_cvt_pk_bf16_f32 v{20+i}, v{OA+2*i}, v{OA+2*i+1}")
    A(f"buffer_store_dwordx4 v[20:23], v{vKo}, s[{rWS}:{rWS+3}], s14 offen sc1")
    stamp(11)
    A(f"s_cmp_lg_u32 s{sKH}, 0"); A("s_cbranch_scc1 L_tail_b")

    WOF, OFR, AC = 128, 64, 32
    A.c("wo fragments -> registers while the stores drain")
    A("v_lshrrev_b32 v2, 5, v0"); A("v_bfe_u32 v1, v0, 2, 2"); A("v_lshl_add_u32 v4, v2, 2, v1"); A("v_lshlrev_b32 v4, 7, v4")
    A("v_lshl_add_u32 v6, v2, 4, v1"); A("v_lshlrev_b32 v6, 7, v6")
    A("v_and_b32 v1, 1, v0"); A("v_lshl_add_u32 v4, v1, 5, v4"); A("v_lshl_add_u32 v6, v1, 3, v6")
    A("v_bfe_u32 v1, v0, 4, 1"); A("v_lshl_add_u32 v4, v1, 4, v4"); A("v_lshl_add_u32 v6, v1, 5, v6")
    A("v_bfe_u32 v1, v0, 1, 1"); A("v_lshl_add_u32 v4, v1, 3, v4"); A("v_lshl_add_u32 v6, v1, 4, v6")
    A("v_bfe_u32 v1, v0, 3, 1"); A("v_lshl_add_u32 v4, v1, 6, v4")
    A(f"v_xor_b32 v1, s{sTT}, v1"); A("v_lshl_add_u32 v6, v1, 6, v6")
    A(f"s_lshl_b32 s8, s{sHP}, 15"); A("v_add_u32 v4, s8, v4"); A("v_xor_b32 v5, 64, v4")
    A(f"s_lshl_b32 s8, s{sHP}, 12"); A(f"s_add_u32 s8, s8, {L_QF}"); A("v_add_u32 v6, s8, v6")
    def wo_reads(f0, f1):
        for f in range(f0, f1):
            for ct in range(2):
                for i in range(2):
                    A(f"ds_read_b64_tr_b16 {vr(WOF + 8*f + 4*ct + 2*i, 2)}, v{4+ct} offset:{(f >> 2)*8192 + (16*(f & 3) + 8*i)*128}")
    wo_reads(0, 8)
    A("s_waitcnt vmcnt(0)")
    gflag(15, 1)
    stamp(12)
    wo_reads(8, 16)
    A(f"s_lshl_b32 s10, s{sTB}, 8"); A(f"s_lshl_b32 s11, s{sHP}, 7"); A("s_add_u32 s10, s10, s11"); A(f"s_lshl_b32 s11, s{sTT}, 2"); A("s_add_u32 s10, s10, s11")
    A("s_lshl_b32 s14, s10, 8"); A(f"s_add_u32 s14, s14, {WS_OF}"); A(f"s_add_u32 s10, s10, {WS_F4}")
    A("v_and_b32 v1, 15, v0"); A("v_lshlrev_b32 v1, 3, v1")
    poll(f"buffer_load_dword v2, v1, s[{rWS}:{rWS+3}], s10 offen sc1", [2], "1", sleep=0)
    stamp(13)
    for f in range(16):
        A(f"buffer_load_dwordx4 {vr(OFR+4*f,4)}, v{vKo}, s[{rWS}:{rWS+3}], s14 offen offset:{(f & 1)*2048} sc1", ("o", f))
        if f & 1 and f < 15: A("s_add_u32 s14, s14, 4096")
    A(f"s_lshl_b32 s8, s{sW}, 12"); A(f"s_add_u32 s10, s8, {L_CONVX}"); A("s_xor_b32 s8, s8, 8192"); A(f"s_add_u32 s11, s8, {L_CONVX}")
    A(f"v_add_u32 v7, s10, v{vKo}"); A(f"v_add_u32 v8, s11, v{vKo}")
    A("v_and_b32 v1, 31, v0"); A("v_lshlrev_b32 v1, 6, v1"); A("v_lshrrev_b32 v2, 5, v0"); A("v_lshl_add_u32 v1, v2, 5, v1"); A("v_add_u32 v9, s11, v1")
    A("v_lshrrev_b32 v1, 2, v0"); A("v_lshlrev_b32 v1, 10, v1"); A("v_and_b32 v2, 3, v0"); A("v_lshl_add_u32 v10, v2, 4, v1")
    A(f"s_lshl_b32 s12, s{sTB}, 16"); A(f"s_lshl_b32 s8, s{sTT}, 15"); A("s_add_u32 s12, s12, s8"); A(f"s_lshl_b32 s8, s{sHG}, 7"); A("s_add_u32 s12, s12, s8")
    A(f"s_lshl_b32 s8, s{sHP}, 6"); A("s_add_u32 s12, s12, s8"); A("s_add_u32 s13, s12, 0x4000")
    A(f"v_sub_f32 v11, 1.0, v{vG}")
    A("s_waitcnt lgkmcnt(0)")
    for f in range(16):
        A.wait(vm=[("o", f)])
        for ct in range(2):
            A(f"v_mfma_f32_32x32x16_bf16 {vr(AC+16*ct,16)}, {vr(WOF+8*f+4*ct,4)}, {vr(OFR+4*f,4)}, {'0' if f == 0 else vr(AC+16*ct,16)}")
    l1 = A.newlabel("t1"); l2 = A.newlabel("td")
    A(f"s_cmp_lg_u32 s{sHP}, 0"); A(f"s_cbranch_scc1 {l1}")
    hist = list(A.hist)
    for i in range(4): A(f"ds_write_b128 v7, {vr(AC+16+4*i,4)} offset:{1024*i}")
    A(f"s_branch {l2}")
    A.label(l1); A.hist = hist
    for i in range(4): A(f"ds_write_b128 v7, {vr(AC+4*i,4)} offset:{1024*i}")
    A("s_waitcnt lgkmcnt(0)")
    for r in range(16): A(f"v_mov_b32 v{AC+r}, v{AC+16+r}")
    A.label(l2)
    A("s_waitcnt lgkmcnt(0)")
    barrier()
    stamp(14)
    for i in range(4): A(f"ds_read_b64_tr_b16 {vr(80+2*i,2)}, v6 offset:{512*i}", "a")
    for i in range(4): A(f"ds_read_b128 {vr(64+4*i,4)}, v8 offset:{1024*i}", ("p", i))
    A.wait(lg="a")
    for i in range(8):
        A(f"v_lshlrev_b32 v{96+2*i}, 16, v{80+i}"); A(f"v_and_b32 v{97+2*i}, 0xffff0000, v{80+i}")
    for r in range(16): A(f"v_mul_f32 v{96+r}, v{vG}, v{96+r}")
    for i in range(4):
        A.wait(lg=[("p", i)])
        for r in range(4*i, 4*i+4): A(f"v_add_f32 v{AC+r}, v{AC+r}, v{64+r}")
        for r in range(4*i, 4*i+4): A(f"v_fmac_f32 v{96+r}, v11, v{AC+r}")
    for i in range(8): A(f"v_cvt_pk_bf16_f32 v{64+i}, v{96+2*i}, v{97+2*i}")
    A("ds_write_b128 v9, v[64:67]"); A("ds_write_b128 v9, v[68:71] offset:16")
    A("s_waitcnt lgkmcnt(0)")
    A("ds_read_b128 v[64:67], v8", "b0"); A("ds_read_b128 v[68:71], v8 offset:1024", "b1")
    A.wait(lg="b0")
    A(f"buffer_store_dwordx4 v[64:67], v10, s[{rOUT}:{rOUT+3}], s12 offen")
    A.wait(lg="b1")
    A(f"buffer_store_dwordx4 v[68:71], v10, s[{rOUT}:{rOUT+3}], s13 offen")
    def dump_stamps():
        if not cfg.stamps: return
        A("s_waitcnt vmcnt(0)")
        stamp(15)
        A(f"s_lshl_b32 s8, s{sID}, 3"); A(f"s_add_u32 s8, s8, s{sW}"); A("s_lshl_b32 s8, s8, 6"); A(f"s_add_u32 s8, s8, {WS_STAMP}")
        A("v_lshlrev_b32 v1, 2, v0")
        A("s_mov_b64 exec, 0xffff")
        A(f"buffer_store_dword v3, v1, s[{rWS}:{rWS+3}], s8 offen")
    dump_stamps()
    A("s_endpgm")

    A.reset()
    A.label("L_tail_b")
    A("s_waitcnt vmcnt(0)")
    gflag(15, 1)
    stamp(12)
    A(f"s_lshl_b32 s10, s{sHG}, 9"); A(f"s_add_u32 s10, s10, {WS_F3}")
    A("v_lshlrev_b32 v1, 3, v0")
    poll(f"buffer_load_dwordx2 v[4:5], v1, s[{rWS}:{rWS+3}], s10 offen sc1", [4, 5], "1", sleep=1)
    A("v_lshrrev_b32 v1, 3, v0"); A("v_lshlrev_b32 v1, 12, v1"); A("v_bfe_u32 v2, v0, 4, 1"); A("v_lshlrev_b32 v2, 2, v2")
    A("v_and_b32 v4, 7, v0"); A("v_xor_b32 v2, v2, v4"); A("v_lshl_add_u32 v1, v2, 4, v1")
    A(f"s_lshl_b32 s10, s{sHG}, 18"); A(f"s_lshl_b32 s11, s{sA}, 16"); A("s_add_u32 s10, s10, s11"); A(f"s_lshl_b32 s11, s{sTB}, 7"); A("s_add_u32 s10, s10, s11")
    A(f"s_add_u32 s10, s10, {WS_AT}"); A(f"s_add_u32 s11, s10, {0x8000 - 1024}")
    A(f"s_lshl_b32 s12, s{sA}, 11"); A(f"s_add_u32 m0, s12, {L_QF}")
    A(f"buffer_load_dwordx4 v1, s[{rWS}:{rWS+3}], s10 offen sc1 lds")
    A(f"buffer_load_dwordx4 v1, s[{rWS}:{rWS+3}], s11 offen offset:1024 sc1 lds")
    A("s_waitcnt vmcnt(0)")
    stamp(13)
    barrier()
    dump_stamps()
    A("s_endpgm")

    A.reset()
    A.label("L_fallback")
    SA, CM = S["A"], S["B"]
    A(f"s_mov_b32 s{sKV}, s{sKV0}"); A("s_mov_b32 s8, 64")
    A("v_mov_b32 v1, 0xff800000")
    A.label("L_fb1")
    A(f"buffer_load_dwordx4 {Kr(0)}, v{vKo}, s[{rWS}:{rWS+3}], s{sKV} offen sc1")
    A("s_waitcnt vmcnt(0)")
    A(f"v_mfma_f32_32x32x16_bf16 {vr(SA,16)}, {Kr(0)}, {vr(Q['A'],4)}, 0")
    for i in range(8): A(f"v_max3_f32 v1, v1, v{SA+2*i}, v{SA+2*i+1}")
    A(f"s_add_u32 s{sKV}, s{sKV}, 2048"); A("s_sub_u32 s8, s8, 1"); A("s_cmp_lg_u32 s8, 0"); A("s_cbranch_scc1 L_fb1")
    A("v_mov_b32 v2, v1")
    A("v_permlane32_swap_b32 v1, v2")
    A("v_max_f32 v1, v1, v2")
    for r in range(16): A(f"v_sub_f32 v{CM+r}, 0, v1")
    for r in range(16): A(f"v_mov_b32 v{OA+r}, 0")
    A(f"s_mov_b32 s{sKV}, s{sKV0}"); A("s_mov_b32 s8, 64")
    A.label("L_fb2")
    A(f"buffer_load_dwordx4 {Kr(0)}, v{vKo}, s[{rWS}:{rWS+3}], s{sKV} offen sc1")
    A(f"s_mov_b64 exec, s[{sVM}:{sVM+1}]")
    for j in range(2): A(f"buffer_load_dwordx4 {Vr(0,j)}, v{vVo}, s[{rWS}:{rWS+3}], s{sKV} offen offset:{1024+512*j} sc1")
    A("s_mov_b64 exec, -1")
    A("s_waitcnt vmcnt(0)")
    A(f"v_mfma_f32_32x32x16_bf16 {vr(SA,16)}, {Kr(0)}, {vr(Q['A'],4)}, {vr(CM,16)}")
    ex("A", 0, 16)
    sm("A", 0, 0); sm("A", 0, 1)
    A(f"s_add_u32 s{sKV}, s{sKV}, 2048"); A("s_sub_u32 s8, s8, 1"); A("s_cmp_lg_u32 s8, 0"); A("s_cbranch_scc1 L_fb2")
    A("s_nop 15")
    A("s_branch L_norm")
    A.label("L_end")
    A("s_endpgm")
    return A

HEAD = """; fused gated mix of an S4 long convolution and a 32-head attention block (generated by gen/gen.py)
; one workgroup per CU: (head group hg of 4 heads, token block tb of 64 tokens), 8 waves
; @launch grid=(256,1,1) block=(512,1,1) lds=%d
.amdgcn_target "amdgcn-amd-amdhsa--gfx950"
.text
.globl %s
.p2align 8
.type %s,@function
""" % (LDS_BYTES, NAME, NAME)
TAIL = """.section .rodata,"a"
.p2align 6
.amdhsa_kernel %s
  .amdhsa_next_free_vgpr 256
  .amdhsa_next_free_sgpr 102
  .amdhsa_accum_offset 256
  .amdhsa_group_segment_fixed_size 0
  .amdhsa_kernarg_size 128
  .amdhsa_user_sgpr_count 2
  .amdhsa_user_sgpr_kernarg_segment_ptr 1
  .amdhsa_system_sgpr_workgroup_id_x 1
.end_amdhsa_kernel
""" % NAME

def build(**kw):
    cfg = Cfg()
    for k, v in kw.items(): setattr(cfg, k, v)
    A = gen(cfg)
    return HEAD + A.text() + TAIL

if __name__ == "__main__":
    kw = {}
    out = "gated_mix__ssm_conv_s4__mha_block__prompt.s"
    for a in sys.argv[1:]:
        k, v = a.split("=", 1)
        if k == "out": out = v
        else: kw[k] = eval(v)
    open(out, "w").write(build(**kw))
    print("wrote", out)
```

```python
import gen as G, sys
base = G.build()
N = G.NAME
line = "; @launch grid=(256,1,1) block=(512,1,1) lds=%d\n" % G.LDS_BYTES
main = f"; @launch kernel={N} grid=(256,1,1) block=(512,1,1) lds={G.LDS_BYTES}\n"
emp = "; @launch kernel=empty_kernel grid=(256,1,1) block=(64,1,1) lds=0\n"
EK = """.text
.globl empty_kernel
.p2align 8
.type empty_kernel,@function
empty_kernel:
    s_endpgm
.section .rodata,"a"
.p2align 6
.amdhsa_kernel empty_kernel
  .amdhsa_next_free_vgpr 8
  .amdhsa_next_free_sgpr 16
  .amdhsa_accum_offset 8
  .amdhsa_group_segment_fixed_size 0
  .amdhsa_kernarg_size 128
  .amdhsa_user_sgpr_count 2
  .amdhsa_user_sgpr_kernarg_segment_ptr 1
  .amdhsa_system_sgpr_workgroup_id_x 1
.end_amdhsa_kernel
"""
open("t_main.s", "w").write(base)
open("t_main2.s", "w").write(base.replace(line, main + main))
open("t_main3.s", "w").write(base.replace(line, main + main + main))
open("t_main_e.s", "w").write(base.replace(line, main + emp) + EK)
open("t_e_main.s", "w").write(base.replace(line, emp + main) + EK)
open("t_main_ee.s", "w").write(base.replace(line, main + emp + emp) + EK)
```

```python
import re

import os
LGMAX = int(os.environ.get("LGMAX", 14))
TRANS = ("v_exp_", "v_log_", "v_rcp_", "v_rsq_", "v_sqrt_", "v_sin_", "v_cos_")

def regs_of(tok):
    tok = tok.strip()
    tok = tok.lstrip("-")
    m = re.fullmatch(r"(?:abs\(|\|)(.*?)(?:\)|\|)", tok)
    if m: tok = m.group(1)
    m = re.fullmatch(r"([vsa])(\d+)", tok)
    if m: return {(m.group(1), int(m.group(2)))}
    m = re.fullmatch(r"([vsa])\[(\d+):(\d+)\]", tok)
    if m: return {(m.group(1), i) for i in range(int(m.group(2)), int(m.group(3)) + 1)}
    if tok == "vcc": return {("s", "vcc_lo"), ("s", "vcc_hi")}
    if tok in ("vcc_lo", "vcc_hi"): return {("s", tok)}
    if tok == "exec": return {("s", "exec_lo"), ("s", "exec_hi")}
    if tok in ("exec_lo", "exec_hi"): return {("s", tok)}
    if tok == "m0": return {("s", "m0")}
    return set()

class Ins:
    def __init__(self, text):
        self.text = text
        t = text.split(";")[0].strip()
        parts = t.split(None, 1)
        self.op = parts[0]
        rest = parts[1] if len(parts) > 1 else ""
        toks = [x.strip() for x in rest.split(",")] if rest else []
        self.mods = ""
        ops = []
        for i, x in enumerate(toks):
            if "op_sel" in self.mods or "neg_" in self.mods:
                self.mods += "," + x; continue
            sp = x.split(None, 1)
            ops.append(sp[0])
            if len(sp) > 1: self.mods += " " + sp[1]
        self.ops = ops
        op = self.op
        R = [regs_of(o) for o in ops]
        U = lambda lst: set().union(*lst) if lst else set()
        self.kind = "other"; self.defs = set(); self.uses = set()
        self.A = self.B = self.C = set(); self.passes = 0; self.data = set()
        if op.startswith("v_mfma") or op.startswith("v_smfmac"):
            self.kind = "mfma"
            self.passes = 8 if "32x32" in op else 4
            self.defs = R[0]; self.A = R[1]; self.B = R[2]
            if op.startswith("v_smfmac"):
                self.C = R[0]; self.B = R[2] | R[3]
            else:
                self.C = R[3]
            self.uses = self.A | self.B | self.C
        elif op.startswith("v_"):
            self.kind = "valu"
            if op.startswith("v_permlane") or op.startswith("v_swap"):
                self.defs = R[0] | R[1]; self.uses = R[0] | R[1]
            elif op.startswith("v_add_co") or op.startswith("v_addc_co") or op.startswith("v_sub_co"):
                self.defs = R[0] | R[1]; self.uses = U(R[2:])
            else:
                self.defs = R[0]; self.uses = U(R[1:])
                if op.startswith(("v_fmac", "v_dot2c", "v_pk_fmac", "v_writelane")) or "UNUSED_PRESERVE" in self.mods or "dpp" in op:
                    self.uses |= R[0]
        elif op.startswith("ds_"):
            self.kind = "ds"
            if op.startswith("ds_read") or "_rtn" in op or op.startswith(("ds_bpermute", "ds_permute", "ds_swizzle")):
                self.defs = R[0]; self.uses = U(R[1:])
            else:
                self.uses = U(R)
        elif op.startswith("buffer_") or op.startswith("global_"):
            self.kind = "vmem"
            islds = " lds" in (" " + self.mods) or "_lds_" in op
            if "load" in op and not islds:
                self.defs = R[0]; self.uses = U(R[1:])
                if "d16" in op: self.uses |= R[0]
            elif "atomic" in op and "sc0" in self.mods and op.startswith("global_"):
                self.defs = R[0]; self.uses = U(R[1:])
            else:
                self.uses = U(R)
                if islds: self.uses |= {("s", "m0")}
                if "store" in op and ("x4" in op or "x3" in op):
                    self.data = R[0] if op.startswith("buffer_") else R[1]
            self.islds = islds
        elif op.startswith("s_"):
            self.kind = "salu"
            if op.startswith(("s_cmp", "s_waitcnt", "s_barrier", "s_nop", "s_branch", "s_cbranch", "s_setprio", "s_sleep", "s_endpgm", "s_bitcmp")):
                self.uses = U(R)
                if "vcc" in op: self.uses |= regs_of("vcc")
            else:
                self.defs = R[0] if R else set(); self.uses = U(R[1:])
                if "saveexec" in op: self.defs |= regs_of("exec")
        self.trans = op.startswith(TRANS)
        self.dl = op.startswith("v_dot")
        self.slots = 1
        if op == "s_nop": self.slots = int(ops[0], 0) + 1

def need(p, c):
    n = 0
    vd = {r for r in p.defs if r[0] in "va"}
    sd = {r for r in p.defs if r[0] == "s"}
    if p.kind == "valu":
        if c.kind == "mfma" and vd & c.uses: n = max(n, 3 if p.dl else 2)
        if c.kind == "valu":
            if p.trans and not c.trans and vd & c.uses: n = max(n, 1)
            if c.op.startswith(("v_readfirstlane", "v_readlane")) and vd & c.uses: n = max(n, 1)
            if (c.op.startswith("v_permlane") or "dpp" in c.op or "row_" in c.mods or "quad_perm" in c.mods) and vd & c.uses: n = max(n, 2)
            if sd & c.uses: n = max(n, 4 if c.op.startswith(("v_readlane", "v_writelane")) else 2)
            if p.dl and vd & (c.uses | c.defs) and c.op != p.op: n = max(n, 3)
            if ("sdwa" in p.op) and vd & (c.uses | c.defs): n = max(n, 1)
        if p.dl and c.kind in ("ds", "vmem") and vd & c.uses: n = max(n, 3)
        if c.kind == "vmem" and sd & c.uses: n = max(n, 5)
        if c.kind == "salu" and sd & c.uses: n = max(n, 2)
    if p.kind == "mfma":
        big = 12 if p.passes == 8 else 8
        if c.kind == "mfma":
            if vd & (c.A | c.B): n = max(n, big)
            if vd & c.C and not (vd == c.C and p.passes == c.passes): n = max(n, big - 2)
        elif c.kind in ("valu", "ds", "vmem"):
            if vd & (c.uses | c.defs): n = max(n, big)
            if c.kind == "valu" and p.C & c.defs: n = max(n, 7 if p.passes == 8 else 3)
    if p.kind == "salu" and ("s", "m0") in p.defs and c.kind == "vmem" and getattr(c, "islds", False): n = max(n, 1)
    if p.kind == "vmem" and p.data and p.data & c.defs: n = max(n, 2 if c.kind == "valu" else 1)
    return n

class Asm:
    def __init__(self):
        self.lines = []
        self.hist = []
        self.vm = []
        self.lg = []
        self.nops = 0
        self.uid = 0
    def raw(self, s): self.lines.append(s)
    def label(self, name):
        self.lines.append(name + ":")
    def newlabel(self, base):
        self.uid += 1
        return f"L_{base}_{self.uid}"
    def c(self, s): self.lines.append("    ; " + s)
    def __call__(self, text, tag=None):
        ins = Ins(text)
        dist = 0; pad = 0
        for p in reversed(self.hist):
            pad = max(pad, need(p, ins) - dist)
            dist += p.slots
            if dist >= 12: break
        if pad > 0:
            nop = Ins(f"s_nop {pad-1}")
            self.lines.append(f"    s_nop {pad-1}"); self.hist.append(nop); self.nops += 1
        self.lines.append("    " + text)
        self.hist.append(ins); self.hist = self.hist[-16:]
        if ins.kind == "vmem": self.vm.append(tag)
        if ins.kind == "ds": self.lg.append(tag)
        if ins.op == "s_waitcnt":
            m = re.search(r"vmcnt\((\d+)\)", text)
            if m:
                k = int(m.group(1)); self.vm = self.vm[len(self.vm) - k:] if k < len(self.vm) and k > 0 else ([] if k == 0 else self.vm)
            m = re.search(r"lgkmcnt\((\d+)\)", text)
            if m:
                k = int(m.group(1)); self.lg = self.lg[len(self.lg) - k:] if k < len(self.lg) and k > 0 else ([] if k == 0 else self.lg)
    def _cnt(self, q, tags):
        if not isinstance(tags, (list, tuple, set)): tags = [tags]
        idx = [i for i, t in enumerate(q) if t in tags]
        if not idx: return None
        return len(q) - 1 - max(idx)
    def wait(self, vm=None, lg=None):
        parts = []
        if vm is not None:
            n = self._cnt(self.vm, vm)
            if n is not None: parts.append(f"vmcnt({min(n, 62)})")
        if lg is not None:
            n = self._cnt(self.lg, lg)
            if n is not None: parts.append(f"lgkmcnt({min(n, LGMAX)})")
        if parts: self("s_waitcnt " + " ".join(parts))
    def reset(self):
        self.hist = []; self.vm = []; self.lg = []
    def text(self): return "\n".join(self.lines) + "\n"

def vr(a, n=1): return f"v{a}" if n == 1 else f"v[{a}:{a+n-1}]"
def sr(a, n=1): return f"s{a}" if n == 1 else f"s[{a}:{a+n-1}]"
```

```python
import sys, struct, math
from asmlib import Asm, vr, sr

NAME = "gated_mix__ssm_conv_s4__mha_block__prompt_kernel"
def f32(x): return "0x%08x" % struct.unpack("<I", struct.pack("<f", x))[0]

XT_STRIDE = 4224
WS_XT = 0
WS_KV = 0x220000
WS_AT = 0x620000
WS_OF = 0x820000
WS_F2 = 0xC00000
WS_F4 = 0xA40000
WS_F3 = 0xA80000
WS_NONCE = 0xA82000
WS_F1 = 0xA90000
WS_FX = 0xA84000
WS_Z = 0xAB0000
WS_STAMP = 0xAD0000
WS_SIZE = 0xE00000
SLOT = 32768
L_SSM = 98304
SSM_CH = 16640
L_KX = 131584
L_QF = 143872
L_EX = 152064
L_MISC = 161792
L_GW = L_MISC
L_FL = L_MISC + 1024
FL_Q, FL_KD, FL_P1, FL_P2, FL_CV, FL_KR = 0, 4, 8, 16, 24, 32
L_TAB = 65536
L_CONVX = 73728
L_OX0, L_OX1 = 65536, 90112
LDS_BYTES = 163840

sW, sHG, sTB, sROT, sID = 3, 4, 5, 6, 7
pX, pAre, pAim, pBre, pBim, pCre, pCim, pLdt, pDsk, pBx, pWqkv, pWo, pGate, pOut, pDbg, pWs = [16 + 2 * i for i in range(16)]
rX, rW, rWS, rWO, rOUT, rG = 48, 52, 56, 60, 64, 68
sLW, sXb, sWb, sXo, sWk, sWv, sKC, sW4, sLO, sHI, sKH = 72, 73, 74, 75, 76, 77, 78, 79, 80, 81, 82
sTAG, sXCC, sSLOW = 96, 97, 90
SPIN_MAX = 400000
WS = f"s[{rWS}:{rWS+3}]"

class Cfg:
    mapping = 0
    P = 4
    stamps = False
    prio = {0: [(None, 2), (14, 1), (3, 0)], 1: [(None, 3), (24, 2), (8, 1)]}
    force_fallback = False
    p1only = False
    convprio = 2
    kgenprio = 1
    kearly = 0
    xtspread = False
    clk = False
    gdrop = None
    f2s = 128
    d0 = 0
    zlate = False
    wo0 = 4
    ola = 6
    osc = 'sc1'
    kvshift = (1, 2)
    nd = 2
    noconv = 0
    kvsc = 'sc1'
    hack = ''
    rot = 'hg'
    psleep = 0
    no_mm = False
    noxt = False
    NT0 = 32
    n0 = 16
    n1 = 4
    cs = 1
    midconv = 31
    fast = True
    outsc = ""
    abounce = False
    obounce = True

STAMPS = []
def gen(cfg):
    A = Asm()
    STAMPS.clear()
    def srd(r, ptr, size):
        A(f"s_mov_b32 s{r}, s{ptr}"); A(f"s_and_b32 s{r+1}, s{ptr+1}, 0xffff")
        A(f"s_mov_b32 s{r+2}, {hex(size)}"); A(f"s_mov_b32 s{r+3}, 0x20000")
    def stamp(name, lvl=1):
        if not cfg.stamps or lvl > cfg.stamps: return
        if name not in STAMPS: STAMPS.append(name)
        i = STAMPS.index(name)
        A("s_memtime s[98:99]" if cfg.clk else "s_memrealtime s[98:99]")
        A("s_waitcnt lgkmcnt(0)")
        A(f"v_writelane_b32 v3, s98, {i}")
    def dump_stamps():
        if not cfg.stamps: return
        A("s_waitcnt vmcnt(0)")
        stamp("end")
        A(f"s_lshl_b32 s8, s{sID}, 3"); A(f"s_add_u32 s8, s8, s{sW}"); A("s_lshl_b32 s8, s8, 8"); A(f"s_add_u32 s8, s8, {WS_STAMP}")
        A("v_lshlrev_b32 v1, 2, v0")
        A(f"buffer_store_dword v3, v1, {WS}, s8 offen")
    def barrier(name=None):
        if name: stamp("pre" + name, 1 if name == "B0" else 2)
        A("s_barrier")
        if name: stamp(name, 1 if name in ("B0", "B7") else 2)
    def lds_signal(off, vtmp):
        A("s_mov_b64 exec, 1")
        A(f"v_mov_b32 v{vtmp}, {off}" if isinstance(off, str) else f"v_mov_b32 v{vtmp}, {L_FL + off}")
        A(f"v_mov_b32 v{vtmp+1}, 1")
        A(f"ds_add_u32 v{vtmp}, v{vtmp+1}")
        A("s_mov_b64 exec, -1")
    def lds_wait(off, count, vtmp):
        lp = A.newlabel("lw"); dn = A.newlabel("lwd")
        A(f"v_mov_b32 v{vtmp}, {off}" if isinstance(off, str) else f"v_mov_b32 v{vtmp}, {L_FL + off}")
        A(f"s_mov_b32 s8, {SPIN_MAX * 8}")
        A.label(lp)
        A(f"ds_read_b32 v{vtmp+1}, v{vtmp}")
        A("s_waitcnt lgkmcnt(0)")
        A(f"v_readfirstlane_b32 s9, v{vtmp+1}")
        A(f"s_cmp_ge_u32 s9, {count}")
        A(f"s_cbranch_scc1 {dn}")
        A("s_sleep 1")
        A("s_sub_u32 s8, s8, 1")
        A("s_cmp_lg_u32 s8, 0")
        A(f"s_cbranch_scc1 {lp}")
        A.label(dn)
    def poll(load, reg, sleep=2, first_issued=False):
        lp = A.newlabel("pl"); dn = A.newlabel("pld"); en = A.newlabel("ple")
        A(f"s_mov_b32 s8, {SPIN_MAX}")
        if first_issued: A(f"s_branch {en}")
        A.label(lp)
        A(load)
        A.label(en)
        A("s_waitcnt vmcnt(0)")
        A(f"v_cmp_ne_u32 vcc, s{sTAG}, v{reg}")
        A(f"s_cbranch_vccz {dn}")
        A("s_mov_b64 exec, vcc")
        if sleep: A(f"s_sleep {sleep}")
        A("s_sub_u32 s8, s8, 1")
        A("s_cmp_lg_u32 s8, 0")
        A(f"s_cbranch_scc1 {lp}")
        A.label(dn)
        A("s_mov_b64 exec, -1")
    def tag_load():
        A(f"s_add_u32 s94, s{pWs}, {WS_NONCE}"); A(f"s_addc_u32 s95, s{pWs+1}, 0")
        A(f"s_load_dword s{sTAG}, s[94:95], 0")
        A(f"s_getreg_b32 s{sXCC}, hwreg(HW_REG_XCC_ID, 0, 4)")
    def tag_finish():
        A("s_waitcnt lgkmcnt(0)")
        A(f"s_mul_i32 s{sTAG}, s{sTAG}, 0x9e3779b1"); A(f"s_add_u32 s{sTAG}, s{sTAG}, 0x7f4a7c15")
    HS = "" if cfg.hack else "sc1"
    def gflag(soff_sgpr, vtmp, sc="sc1"):
        A("s_mov_b64 exec, 1")
        A(f"v_mov_b32 v{vtmp}, s{sTAG}")
        A(f"buffer_store_dword v{vtmp}, off, {WS}, s{soff_sgpr} {sc}")
        A("s_mov_b64 exec, -1")
    def two_way(sreg, f0, f1):
        l1 = A.newlabel("el"); l2 = A.newlabel("fi")
        A(f"s_cmp_lg_u32 s{sreg}, 0"); A(f"s_cbranch_scc1 {l1}")
        hist = list(A.hist)
        f0()
        A(f"s_branch {l2}")
        A.label(l1); A.hist = hist
        f1()
        A.label(l2)

    vX0, vX1, vW0, vW1 = 4, 5, 6, 7
    def dma_piece(ldsoff, v0_, v1_, rs, so, tag, pre=()):
        A(f"s_add_u32 m0, s{sLW}, {ldsoff}")
        for p in pre: A(p)
        A(f"buffer_load_dwordx4 v{v0_}, s[{rs}:{rs+3}], s{so} offen lds", tag)
        A(f"buffer_load_dwordx4 v{v1_}, s[{rs}:{rs+3}], s{so} offen offset:1024 lds", tag)
    KS, VS = cfg.kvshift
    def step_dmas(st, what="xqkv"):
        slot = (st % 3) * SLOT
        tag = ("st" if "x" in what else "wq", st)
        pre = [f"s_add_u32 s{sKC}, s{sROT}, {st}", f"s_and_b32 s{sKC}, s{sKC}, 7"]
        if "x" in what:
            dma_piece(slot, vX0, vX1, rX, sXo, tag, pre + [f"s_lshl_b32 s{sXo}, s{sKC}, 7", f"s_add_u32 s{sXo}, s{sXo}, s{sXb}"])
            pre = []
        pre += [f"s_mul_i32 s{sWk}, s{sKC}, 196608", f"s_add_u32 s{sWk}, s{sWk}, s{sWb}"]
        if "q" in what and not ("x" in what and st >= 8 - cfg.nd):
            dma_piece(slot + 8192, vW0, vW1, rW, sWk, tag, pre); pre = []
        if "k" in what:
            dma_piece(slot + 16384, vW0, vW1, rW, sWv, tag, pre + [f"s_add_u32 s{sWv}, s{sWk}, 1024", f"s_xor_b32 s{sWv}, s{sWv}, {128*KS}"])
            dma_piece(slot + 24576, vW0, vW1, rW, sWk, tag, [f"s_add_u32 s{sWk}, s{sWk}, 2048", f"s_xor_b32 s{sWk}, s{sWk}, {128*VS}"])

    P = cfg.P
    NT0, NT1 = cfg.NT0, 64 - cfg.NT0
    sA, sKV, sKV0, sWOo, sWOl, sVM, sF3 = sW4, 83, 84, 85, 86, 88, 91
    vIdx, vKo, vVo, vWO = 12, 13, 14, 15
    S = {"A": 16, "B": 32}; O = {"A": 48, "B": 64}; Q = {"A": 4, "B": 8}
    ST = 80
    Kr = lambda s: vr(ST + 12 * s, 4)
    Vr = lambda s, j: vr(ST + 12 * s + 4 + 4 * j, 4)
    def load_tile(i):
        s = i % P; off = (i & 1) * 2048
        T = [lambda: A(f"buffer_load_dwordx4 {Kr(s)}, v{vKo}, {WS}, s{sKV} offen offset:{off} {cfg.kvsc}", ("k", i))]
        def vl():
            A(f"s_mov_b64 exec, s[{sVM}:{sVM+1}]")
            for j in range(2): A(f"buffer_load_dwordx4 {Vr(s,j)}, v{vVo}, {WS}, s{sKV} offen offset:{off+1024+512*j} {cfg.kvsc}", ("v", i))
            A("s_mov_b64 exec, -1")
            if i & 1: A(f"s_add_u32 s{sKV}, s{sKV}, 4096")
        T.append(vl)
        return T
    NT = 32
    J1 = NT - 9; J2 = J1 + P
    wo_at = list(range(NT - 12, NT - 4))
    vF3, vFX, vAT, vZA, ZP, vQA = 132, 133, 134, 135, 136, 254
    sFXo, sZo, sATo, sF3o = 72, 73, 74, 75
    def attn_setup():
        L = []; B = L.append
        B(f"s_lshl_b32 s8, s{sHG}, 2"); B(f"s_add_u32 s8, s8, s{sA}")
        B(f"s_lshl_b32 s{sKV0}, s8, 17"); B(f"s_add_u32 s{sKV0}, s{sKV0}, {WS_KV}")
        B(f"s_lshl_b32 s8, s{sKH}, 16"); B(f"s_add_u32 s{sKV}, s{sKV0}, s8")
        B(f"s_lshl_b32 s{sWOo}, s{sW}, 13"); B(f"s_lshl_b32 s8, s{sHG}, 7"); B(f"s_add_u32 s{sWOo}, s{sWOo}, s8")
        B(f"s_lshl_b32 s{sWOl}, s{sW}, 10")
        B(f"s_mov_b32 s{sVM}, 0xffff"); B(f"s_mov_b32 s{sVM+1}, 0xffff")
        B(f"v_lshlrev_b32 v{vKo}, 4, v0")
        B("v_and_b32 v1, 15, v0"); B("v_lshrrev_b32 v255, 5, v0"); B("v_lshl_add_u32 v1, v255, 4, v1"); B(f"v_lshlrev_b32 v{vVo}, 4, v1")
        B(f"v_mov_b32 v{vIdx}, 0xdddddddd")
        B("v_and_b32 v1, 27, v0"); B("v_cmp_eq_u32 vcc, 16, v1"); B("v_mov_b32 v1, 0x3f803f80"); B("v_cndmask_b32 v1, 0, v1, vcc")
        for s_ in range(P):
            for r in range(4, 12): B(f"v_mov_b32 v{ST+12*s_+r}, v1")
        for r in range(48, 80): B(f"v_mov_b32 v{r}, 0")
        B(f"s_lshl_b32 s8, s{sA}, 11"); B(f"s_add_u32 s8, s8, {L_QF}"); B(f"v_add_u32 v{vQA}, s8, v{vKo}")
        B("v_bfe_u32 v1, v0, 4, 1"); B("v_lshlrev_b32 v1, 2, v1")
        B("v_and_b32 v255, 7, v0"); B(f"v_lshlrev_b32 v{vFX}, 3, v255"); B("v_xor_b32 v1, v1, v255"); B("v_lshlrev_b32 v1, 4, v1")
        B("v_lshrrev_b32 v255, 3, v0")
        B(f"v_lshl_add_u32 v{vAT}, v255, 12, v1"); B(f"v_lshl_add_u32 v{vWO}, v255, 10, v1")
        B(f"v_lshlrev_b32 v{vF3}, 3, v0"); B(f"v_lshlrev_b32 v{vZA}, 2, v0")
        B(f"s_lshl_b32 s8, s{sTB}, 1"); B(f"s_add_u32 s8, s8, s{sLO}")
        B(f"s_lshl_b32 s{sFXo}, s8, 7"); B(f"s_add_u32 s{sFXo}, s{sFXo}, {WS_FX}")
        B(f"s_lshl_b32 s{sZo}, s8, 11"); B(f"s_add_u32 s{sZo}, s{sZo}, {WS_Z}")
        B(f"s_lshl_b32 s{sATo}, s{sHG}, 18"); B(f"s_lshl_b32 s8, s{sW}, 15"); B(f"s_add_u32 s{sATo}, s{sATo}, s8"); B(f"s_lshl_b32 s8, s{sTB}, 7"); B(f"s_add_u32 s{sATo}, s{sATo}, s8")
        B(f"s_add_u32 s{sATo}, s{sATo}, {WS_AT}")
        B(f"s_lshl_b32 s{sF3o}, s{sHG}, 9"); B(f"s_add_u32 s{sF3o}, s{sF3o}, {WS_F3}")
        return L
    def attn_start():
        lds_wait(FL_KR, 1, 244)
        stamp("kvrdy")
        A.vm = []
        for i in range(P):
            for t in load_tile(i): t()
        A(f"ds_read_b128 {vr(Q['A'],4)}, v{vQA}", "qf"); A(f"ds_read_b128 {vr(Q['B'],4)}, v{vQA} offset:1024", "qf")
    side_ld = [f"buffer_load_dwordx2 v[128:129], v{vF3}, {WS}, s{sF3o} offen sc1", f"buffer_load_dwordx2 v[130:131], v{vFX}, {WS}, s{sFXo} offen sc1"]
    def side_cmp():
        A(f"v_cmp_ne_u32 vcc, s{sTAG}, v128"); A(f"v_cmp_ne_u32 s[92:93], s{sTAG}, v129"); A(f"v_cmp_ne_u32 s[10:11], s{sTAG}, v130")
        A("s_or_b64 vcc, vcc, s[92:93]"); A("s_or_b64 vcc, vcc, s[10:11]")
    def qk(t, i): A(f"v_mfma_f32_32x32x16_bf16 {vr(S[t],16)}, {Kr(i % P)}, {vr(Q[t],4)}, 0")
    def sm(t, i, j): A(f"v_smfmac_f32_32x32x32_bf16 {vr(O[t],16)}, {Vr(i % P, j)}, {vr(S[t]+8*j,8)}, v{vIdx}")
    def ex(t, a, b):
        for r in range(a, b): A(f"v_exp_f32 v{S[t]+r}, v{S[t]+r}")
    def tile(i, extra=None):
        X = {k: [] for k in range(33)}
        if i >= 1: X[2].append(lambda: sm("B", i - 1, 1))
        if i >= 1 and i - 1 + P < NT:
            nl = load_tile(i - 1 + P); X[3].append(nl[0]); X[4].append(nl[1])
        X[5].append(lambda: qk("B", i))
        X[10].append(lambda: A.wait(vm=[("v", i), ("k", i + 1)] + (["side"] if i == J2 else [])))
        X[10].append(lambda: sm("A", i, 0))
        X[18].append(lambda: sm("A", i, 1))
        if i + 1 < NT: X[21].append(lambda: qk("A", i + 1))
        X[26].append(lambda: sm("B", i, 0))
        for k, v in (extra or {}).items(): X[k] += v
        for k in range(32):
            for f in X[k]: f()
            ex("A" if k < 16 else "B", k & 15, (k & 15) + 1)
        for f in X[32]: f()

    A.label(NAME)
    A("s_cmp_ge_u32 s2, 256")
    A("s_cbranch_scc1 L_end")
    A("s_load_dwordx16 s[16:31], s[0:1], 0")
    A("s_load_dwordx16 s[32:47], s[0:1], 64")
    A.c("pull this kernel's code into L2: one line per wave")
    A("s_getpc_b64 s[12:13]")
    A.label("L_pc")
    A("v_lshrrev_b32 v1, 6, v0")
    A("s_and_b32 s9, s2, 0xf8")
    A("v_add_lshl_u32 v2, v1, s9, 7")
    A("v_min_u32 v2, L_end-L_pc, v2")
    A("global_load_dword v2, v2, s[12:13]", "pf")
    A(f"v_readfirstlane_b32 s{sW}, v1")
    A("v_and_b32 v0, 63, v0")
    if cfg.stamps: A("v_mov_b32 v3, 0")
    xh = cfg.mapping; hb = 3 - xh
    A("s_and_b32 s8, s2, 7"); A("s_lshr_b32 s9, s2, 3")
    A(f"s_and_b32 s10, s8, {(1 << xh) - 1}"); A(f"s_lshl_b32 s10, s10, {hb}")
    A(f"s_and_b32 s11, s9, {(1 << hb) - 1}"); A(f"s_or_b32 s{sHG}, s10, s11")
    A(f"s_lshr_b32 s10, s8, {xh}"); A(f"s_lshl_b32 s10, s10, {5 - hb}")
    A(f"s_lshr_b32 s11, s9, {hb}"); A(f"s_or_b32 s{sTB}, s10, s11")
    A(f"s_lshl_b32 s{sID}, s{sHG}, 5"); A(f"s_or_b32 s{sID}, s{sID}, s{sTB}")
    A(f"s_and_b32 s{sW4}, s{sW}, 3"); A(f"s_lshr_b32 s{sKH}, s{sW}, 2")
    A("s_cbranch_scc0 L_common")
    A.c("SSM waves: parameter loads go out first")
    pAr, pAi, pBr, pBi, pCr, pCi, pL, pD = 20, 21, 22, 23, 24, 25, 26, 27
    A("s_setprio 3")
    A(f"s_lshl_b32 s8, s{sID}, 2"); A(f"s_add_u32 s8, s8, s{sW4}")
    A("s_lshl_b32 s9, s8, 7"); A("s_and_b32 s8, s8, -2")
    A("v_lshl_add_u32 v1, v0, 1, s9")
    A("v_mov_b32 v12, s8")
    A("s_waitcnt lgkmcnt(0)")
    A(f"global_load_ushort v{pL}, v12, s[{pLdt}:{pLdt+1}]", "par")
    for r, p in ((pAr, pAre), (pAi, pAim)): A(f"global_load_ushort v{r}, v1, s[{p}:{p+1}]", "par")
    for r, p in ((pBr, pBre), (pBi, pBim), (pCr, pCre), (pCi, pCim)): A(f"global_load_ushort v{r}, v1, s[{p}:{p+1}]", "par2")
    A(f"global_load_ushort v{pD}, v12, s[{pDsk}:{pDsk+1}]", "par2")
    ssm_vm = list(A.vm)
    A.label("L_common")
    A.c("DMA source offsets")
    A(f"s_add_u32 s{sROT}, s{sHG}, s{sTB}")
    if cfg.rot == "none": A(f"s_mov_b32 s{sROT}, 0")
    if cfg.rot == "xcd": A(f"s_mov_b32 s{sROT}, s2")
    if cfg.rot == "hg": A(f"s_mov_b32 s{sROT}, s{sHG}")
    if cfg.rot == "hgx": A(f"s_add_u32 s{sROT}, s{sHG}, s2")
    if cfg.rot == "half": A(f"s_lshl_b32 s{sROT}, s{sROT}, 2"); A(f"s_add_u32 s{sROT}, s{sROT}, s2")
    if cfg.rot == "adj2": A(f"s_and_b32 s{sROT}, s{sROT}, 1"); A(f"s_add_u32 s{sROT}, s{sROT}, s2")
    if cfg.rot == "hg2tb": A(f"s_add_u32 s{sROT}, s{sROT}, s{sTB}")
    if cfg.rot == "hg4tb": A(f"s_lshl_b32 s{sROT}, s{sTB}, 2"); A(f"s_add_u32 s{sROT}, s{sROT}, s{sHG}")
    if cfg.rot == "hg4tbx": A(f"s_lshl_b32 s{sROT}, s{sTB}, 2"); A(f"s_add_u32 s{sROT}, s{sROT}, s{sHG}"); A(f"s_add_u32 s{sROT}, s{sROT}, s2")
    if cfg.rot == "hgtb1x": A(f"s_and_b32 s{sROT}, s{sTB}, 1"); A(f"s_add_u32 s{sROT}, s{sROT}, s{sHG}"); A(f"s_add_u32 s{sROT}, s{sROT}, s2")
    A(f"s_and_b32 s{sROT}, s{sROT}, 7")
    A("v_lshrrev_b32 v1, 3, v0")
    A("v_lshrrev_b32 v14, 4, v0")
    A("v_and_b32 v12, 7, v0")
    A("v_xor_b32 v13, v12, v14")
    A("v_lshlrev_b32 v13, 4, v13")
    A(f"v_lshl_add_u32 v{vX0}, v1, 10, v13")
    A(f"v_xor_b32 v{vX1}, 64, v{vX0}")
    A(f"v_add_u32 v{vX1}, {8192 - 1024}, v{vX1}")
    A("v_and_b32 v14, 1, v14"); A("v_lshlrev_b32 v14, 2, v14"); A("v_xor_b32 v13, v12, v14"); A("v_lshlrev_b32 v13, 4, v13")
    A(f"v_mul_u32_u24 v{vW0}, 3072, v1"); A(f"v_add_u32 v{vW0}, v{vW0}, v13")
    A(f"v_add_u32 v{vW1}, {8 * 3072 - 1024}, v{vW0}")
    A(f"s_and_b32 s{sLO}, s{sW}, 1"); A(f"s_lshr_b32 s{sHI}, s{sW4}, 1")
    A(f"s_lshl_b32 s{sLW}, s{sW4}, 11")
    A(f"s_lshl_b32 s{sXb}, s{sTB}, 16"); A(f"s_lshl_b32 s8, s{sW4}, 14"); A(f"s_add_u32 s{sXb}, s{sXb}, s8")
    A(f"s_mul_i32 s{sWb}, s{sW4}, 49152"); A(f"s_lshl_b32 s8, s{sHG}, 7"); A(f"s_add_u32 s{sWb}, s{sWb}, s8")
    A("s_waitcnt lgkmcnt(0)")
    stamp("start")
    srd(rX, pX, 0x200000); srd(rW, pWqkv, 0x180000)
    A("s_barrier")
    A(f"s_cmp_lg_u32 s{sKH}, 0")
    A("s_cbranch_scc1 L_ssm")
    A.vm = ["pf"]

    sTT, sHP = sLO, sHI
    vAX, vAXh, vAW, vAWh = 8, 24, 16, 17
    vKst, vVst, vGA, vGacc, vG = 18, 19, 20, 21, 15
    aQ, aK, aV, FR, TMP, X0 = 32, 128, 144, 160, 96, 224
    step_dmas(0)
    GF = 240
    A.c("gate_w fragments of this workgroup's first chunk")
    A("v_lshrrev_b32 v22, 5, v0"); A(f"s_lshl_b32 s8, s{sROT}, 7"); A("v_lshl_add_u32 v1, v22, 4, s8")
    for ks in range(4): A(f"global_load_dwordx4 {vr(GF+4*ks,4)}, v1, s[{pGate}:{pGate+1}] offset:{32*ks}", "gw")
    tag_load()
    srd(rWS, pWs, WS_SIZE); srd(rWO, pWo, 0x80000); srd(rOUT, pOut, 0x200000)
    A.c("fragment read addresses")
    A("v_and_b32 v1, 31, v0")
    A("v_bfe_u32 v12, v0, 1, 3"); A("v_xor_b32 v12, v12, v22"); A("v_lshlrev_b32 v12, 4, v12")
    A("v_lshl_add_u32 v12, v1, 7, v12")
    A(f"s_lshl_b32 s8, s{sTT}, 12")
    A(f"v_add_u32 v{vAX}, s8, v12")
    for ks in range(1, 4): A(f"v_xor_b32 v{vAX+ks}, {32*ks}, v{vAX}")
    for ks in range(4): A(f"v_add_u32 v{vAXh+ks}, {2*SLOT}, v{vAX+ks}")
    A("v_bfe_u32 v12, v0, 2, 2"); A("v_lshl_add_u32 v12, v22, 3, v12"); A("v_lshlrev_b32 v12, 7, v12")
    A("v_bfe_u32 v13, v0, 4, 1"); A("v_lshlrev_b32 v13, 1, v13"); A("v_bfe_u32 v14, v0, 1, 1"); A("v_or_b32 v13, v13, v14")
    A("v_bfe_u32 v14, v0, 3, 1"); A(f"v_xor_b32 v14, s{sHP}, v14"); A("v_lshl_or_b32 v13, v14, 2, v13")
    A("v_lshl_add_u32 v12, v13, 4, v12")
    A("v_and_b32 v13, 1, v0"); A(f"v_lshl_add_u32 v{vAW}, v13, 3, v12")
    A(f"v_add_u32 v{vAWh}, {2*SLOT}, v{vAW}")
    A.c("K store offset: lane with bits 2,3 swapped; V store offset")
    A("v_and_b32 v12, 0x33, v0"); A("v_bfe_u32 v13, v0, 2, 1"); A("v_lshl_or_b32 v12, v13, 3, v12")
    A("v_bfe_u32 v13, v0, 3, 1"); A("v_lshl_or_b32 v12, v13, 2, v12"); A(f"v_lshlrev_b32 v{vKst}, 4, v12")
    A("v_and_b32 v12, 15, v0"); A("v_lshl_add_u32 v12, v22, 4, v12"); A("v_lshlrev_b32 v12, 4, v12")
    A("v_bfe_u32 v13, v0, 4, 1"); A(f"v_lshl_add_u32 v{vVst}, v13, 17, v12")
    A(f"v_lshlrev_b32 v{vGA}, 2, v0")
    A(f"v_mov_b32 v{vGacc}, 0")
    A(f"s_lshl_b32 s8, s{sHG}, 1"); A(f"s_add_u32 s8, s8, s{sHP}")
    A(f"s_lshl_b32 s9, s{sTB}, 1"); A(f"s_add_u32 s9, s9, s{sTT}")
    A("s_lshl_b32 s10, s8, 18"); A("s_lshl_b32 s11, s9, 11"); A("s_add_u32 s10, s10, s11")
    A(f"s_xor_b32 s87, s10, {VS << 19}"); A(f"s_add_u32 s87, s87, {WS_KV}"); A(f"s_xor_b32 s10, s10, {KS << 19}")
    A(f"s_add_u32 s10, s10, {WS_KV}"); A("s_add_u32 s11, s10, 0x20000")
    A(f"s_mul_i32 s12, s{sID}, {cfg.f2s}"); A(f"s_add_u32 s12, s12, {WS_F2}")
    A(f"s_lshl_b32 s13, s9, 11"); A(f"s_lshl_b32 s14, s{sHG}, 8"); A("s_add_u32 s13, s13, s14"); A(f"s_add_u32 s13, s13, {WS_Z}")
    A(f"s_lshl_b32 s14, s9, 7"); A(f"s_lshl_b32 s15, s{sHG}, 3"); A("s_add_u32 s14, s14, s15"); A(f"s_add_u32 s14, s14, {WS_FX}")
    A(f"s_lshl_b32 s8, s{sHP}, 12"); A(f"s_lshl_b32 s9, s{sTT}, 10"); A("s_add_u32 s8, s8, s9"); A(f"s_add_u32 s8, s8, {L_QF}")
    A("v_lshl_add_u32 v23, v0, 4, s8")
    A(f"s_mov_b32 s15, {f32(0.25 * math.log2(math.e))}")
    step_dmas(1)
    stamp("dmaiss", 2)
    GD = 32 - 4 * max(cfg.nd, 1)
    XL = 48
    xreg = lambda g: X0 + 4 * g if g < 4 else (XL + 4 * (g - GD) if g >= GD and cfg.nd else FR + 16 * (g & 3))
    def wread(dst, g, p, tag):
        st, ks = g >> 2, g & 3
        slot = st % 3
        hi = slot >= 2; o = (slot - 2 * hi) * SLOT
        return [lambda i=i: A(f"ds_read_b64_tr_b16 {vr(dst + 2*i, 2)}, v{vAWh if hi else vAW} offset:{o + 8192*(p+1) + (16*ks + 4*i) * 128}", tag) for i in range(2)]
    def reads(g):
        st, ks = g >> 2, g & 3
        slot = st % 3
        hi = slot >= 2; o = (slot - 2 * hi) * SLOT
        A(f"ds_read_b128 {vr(xreg(g), 4)}, v{(vAXh if hi else vAX) + ks} offset:{o}", ("r", g))
        for p in (1, 2, 0):
            if p == 0 and cfg.nd and g >= GD: continue
            for f in wread(FR + 16*ks + 4 + 4*p, g, p, ("r", g)): f()
    qfree = [FR + 4 * i for i in range(8)] + [FR + 32, FR + 36, FR + 48, FR + 52]
    qreg = lambda g: qfree[g - GD] if cfg.nd else FR + 16 * (g & 3) + 4
    tag_finish()
    A("s_setprio 2")
    A.wait(vm=[("st", 0)])
    barrier("B0")
    reads(0); reads(1)
    late_q = []; late_r = []
    def drain_r(n):
        for _ in range(n):
            if late_r: late_r.pop(0)()
    for g in range(32):
        st, ks = g >> 2, g & 3
        if ks == 2:
            A.wait(vm=[("st", st + 1)], lg=[("r", g), ("r", g + 1)])
            barrier(f"B{st+1}")
            if st < 7: reads(g + 2)
            elif cfg.nd:
                for gg in range(GD, 32): late_r += wread(qreg(gg), gg, 0, ("q", gg))
        else:
            A.wait(lg=[("r", g)])
        x = vr(xreg(g), 4); w = FR + 16 * ks + 4
        A(f"v_mfma_f32_32x32x16_bf16 {vr(aK,16)}, {vr(w+4,4)}, {x}, {'0' if g == 0 else vr(aK,16)}")
        if ks != 2 and g + 2 < 32: reads(g + 2)
        drain_r(3)
        A(f"v_mfma_f32_32x32x16_bf16 {vr(aV,16)}, {x}, {vr(w+8,4)}, {'0' if g == 0 else vr(aV,16)}")
        drain_r(3)
        def qm(x=x, g=g):
            A.wait(lg=[("q", g)])
            A(f"v_mfma_f32_32x32x16_bf16 {vr(aQ,16)}, {vr(qreg(g) if g >= GD else FR + 16*(g & 3) + 4,4)}, {x}, {'0' if g == 0 else vr(aQ,16)}")
        if g < GD: qm()
        else: late_q.append(qm)
    drain_r(99)
    A.c("K/V epilogue; the last Q products run under it")
    for e in range(2):
        late_q.pop(0)()
        for i in range(4): A(f"v_cvt_pk_bf16_f32 v{TMP+4*e+i}, v{aK+8*e+2*i}, v{aK+8*e+2*i+1}")
        A(f"buffer_store_dwordx4 {vr(TMP+4*e,4)}, v{vKst}, {WS}, s{10+e} offen {HS}")
    for j in range(2):
        late_q.pop(0)()
        for i in range(4): A(f"v_cvt_pk_bf16_f32 v{TMP+8+4*j+i}, v{aV+8*j+2*i}, v{aV+8*j+2*i+1}")
        A(f"buffer_store_dwordx4 {vr(TMP+8+4*j,4)}, v{vVst}, {WS}, s87 offen offset:{1024+512*j} {HS}")
    stamp("kvst")
    if cfg.gdrop is not None: A(f"s_setprio {cfg.gdrop}")
    for f in late_q: f()
    A.c("Q fragments -> LDS")
    for e in range(2):
        for r in range(8): A(f"v_mul_f32 v{aQ+8*e+r}, s15, v{aQ+8*e+r}")
        for i in range(4): A(f"v_cvt_pk_bf16_f32 v{aQ+8*e+i}, v{aQ+8*e+2*i}, v{aQ+8*e+2*i+1}")
        A(f"ds_write_b128 v23, {vr(aQ+8*e,4)} offset:{2048*e}")
    A.c("partial gate logit over the first chunk (the eight workgroups of a token block cover all chunks)")
    for r in range(16): A(f"v_dot2c_f32_bf16 v{vGacc}, v{X0+r}, v{GF+r}")
    stamp("qdone")
    for t in attn_setup(): A(t)
    A.c("the last wave to drain its K/V stores raises the workgroup's word and waits for the 64 producers")
    A("s_waitcnt vmcnt(0)")
    A("s_mov_b64 exec, 1")
    A(f"v_mov_b32 v1, {L_FL + FL_KD}"); A("v_mov_b32 v2, 1")
    A("ds_add_rtn_u32 v2, v1, v2")
    A("s_mov_b64 exec, -1")
    A(f"s_xor_b32 s10, s{sHG}, {KS}")
    A("v_lshrrev_b32 v1, 5, v0"); A(f"v_mul_u32_u24 v1, {KS ^ VS}, v1"); A("v_xor_b32 v1, s10, v1")
    A("v_and_b32 v17, 31, v0"); A("v_lshl_add_u32 v17, v1, 5, v17"); A(f"v_mul_u32_u24 v17, {cfg.f2s}, v17")
    A(f"s_mov_b32 s10, {WS_F2}")
    A("s_waitcnt lgkmcnt(0)")
    A("v_readfirstlane_b32 s11, v2")
    lb = A.newlabel("nolast")
    A("s_cmp_lg_u32 s11, 3"); A(f"s_cbranch_scc1 {lb}")
    gflag(12, 1, HS)
    A.label(lb)
    stamp("kvflag")
    if cfg.p1only:
        dump_stamps(); A("s_endpgm")
    lb = A.newlabel("noz")
    A(f"s_cmp_lg_u32 s{sHP}, 0"); A(f"s_cbranch_scc1 {lb}")
    A(f"buffer_store_dword v{vGacc}, v{vGA}, {WS}, s13 offen sc1")
    A.label(lb)
    A("s_waitcnt vmcnt(0)")
    lb = A.newlabel("nofx")
    A(f"s_cmp_lg_u32 s{sHP}, 0"); A(f"s_cbranch_scc1 {lb}")
    A("s_mov_b64 exec, 1")
    A(f"v_mov_b32 v22, s{sTAG}"); A(f"v_mov_b32 v23, s{sXCC}")
    A(f"buffer_store_dwordx2 v[22:23], off, {WS}, s14 sc1")
    A("s_mov_b64 exec, -1")
    A.label(lb)
    lb = A.newlabel("nopoll")
    A("s_cmp_lg_u32 s11, 3"); A(f"s_cbranch_scc1 {lb}")
    if cfg.d0: A(f"s_sleep {cfg.d0}")
    poll(f"buffer_load_dword v18, v17, {WS}, s10 offen sc1", 18, sleep=cfg.psleep)
    lds_signal(FL_KR, 1)
    A.label(lb)
    attn_start()
    g_state = (list(A.vm), list(A.lg))
    A("s_branch L_attn")

    A.reset(); A.vm = ssm_vm
    A.label("L_ssm")
    sWp, sCHL, sNH = sW4, sHI, sLO
    sCH, sTAB, sKXb, sU, sF1 = 100, 84, 85, 86, 87
    tag_load()
    A(f"s_lshl_b32 s{sCH}, s{sID}, 1"); A(f"s_add_u32 s{sCH}, s{sCH}, s{sCHL}")
    srd(rWS, pWs, WS_SIZE); srd(rWO, pWo, 0x80000); srd(rOUT, pOut, 0x200000)
    ZR = 28
    for r in range(ZR, ZR + 4): A(f"v_mov_b32 v{r}, 0")
    A.c("zero the LDS flags and the negative-index part of the K planes")
    A("v_and_b32 v1, 3, v0"); A("v_lshlrev_b32 v1, 4, v1"); A(f"v_add_u32 v1, {L_FL}, v1")
    A(f"ds_write_b128 v1, {vr(ZR,4)}")
    A("v_and_b32 v1, 31, v0"); A("v_lshlrev_b32 v1, 4, v1"); A("v_lshrrev_b32 v15, 5, v0")
    A("v_mul_u32_u24 v12, 1536, v15"); A("v_add_u32 v1, v1, v12")
    A(f"s_mul_i32 s8, s{sWp}, 3072"); A(f"s_add_u32 s8, s8, {L_KX}"); A("v_add_u32 v1, s8, v1")
    A(f"ds_write_b128 v1, {vr(ZR,4)}")
    vTW, vTR = 48, 13
    A(f"s_mul_i32 s{sU}, s{sCHL}, {SSM_CH}"); A(f"s_add_u32 s{sU}, s{sU}, {L_SSM}")
    assert cfg.kearly == 0 and cfg.nd <= 2
    A(f"s_lshl_b32 s8, s{sWp}, 13"); A(f"s_add_u32 s{sTAB}, s8, {L_TAB}")
    A(f"s_mul_i32 s{sKXb}, s{sCHL}, 6144"); A(f"s_add_u32 s{sKXb}, s{sKXb}, {L_KX}")
    A.c("zero heads of two of the shifted copies of u")
    A("v_and_b32 v1, 7, v0"); A("v_min_u32 v1, 6, v1"); A("v_lshlrev_b32 v1, 3, v1"); A("v_bfe_u32 v12, v0, 3, 1"); A("v_mul_u32_u24 v12, 4160, v12")
    A(f"s_mul_i32 s8, s{sNH}, 8320"); A(f"s_add_u32 s8, s8, s{sU}"); A("v_add3_u32 v1, v1, v12, s8")
    A(f"ds_write_b64 v1, {vr(ZR,2)} offset:8")
    A("v_and_b32 v1, 7, v0"); A("v_lshlrev_b32 v1, 4, v1"); A("v_lshl_add_u32 v1, v0, 7, v1"); A(f"v_add_u32 v{vTW}, s{sTAB}, v1")
    for j in range(1, 8): A(f"v_xor_b32 v{vTW+j}, {16*j}, v{vTW}")
    A("v_bfe_u32 v1, v0, 3, 1"); A("v_lshl_add_u32 v1, v15, 2, v1")
    A("v_bfe_u32 v16, v0, 2, 1"); A("v_lshlrev_b32 v16, 2, v16"); A("v_bfe_u32 v17, v0, 4, 1"); A("v_lshl_or_b32 v16, v17, 1, v16")
    A("v_bfe_u32 v17, v0, 1, 1"); A("v_or_b32 v16, v16, v17"); A("v_xor_b32 v16, v16, v1"); A("v_lshlrev_b32 v16, 4, v16")
    A("v_lshl_add_u32 v1, v1, 7, v16"); A("v_and_b32 v16, 1, v0"); A("v_lshl_add_u32 v1, v16, 3, v1")
    A(f"v_add_u32 v{vTR}, s{sTAB}, v1"); A(f"v_xor_b32 v{vTR+1}, 32, v{vTR}")
    A.c("x transpose addresses: v8..11 read, v12 store")
    A("v_lshrrev_b32 v18, 4, v0"); A("v_bfe_u32 v16, v0, 2, 2"); A("v_lshl_add_u32 v1, v18, 4, v16"); A("v_lshlrev_b32 v1, 7, v1")
    A("v_bfe_u32 v16, v0, 1, 1"); A("v_bfe_u32 v17, v0, 3, 1"); A("v_xor_b32 v16, v16, v17")
    A(f"s_lshl_b32 s8, s{sWp}, 1"); A("v_or_b32 v16, s8, v16"); A("v_lshl_add_u32 v1, v16, 4, v1")
    A("v_and_b32 v16, 1, v0"); A("v_lshl_add_u32 v8, v16, 3, v1")
    for i in range(1, 4): A(f"v_xor_b32 v{8+i}, {32*i}, v8")
    A("v_and_b32 v1, 14, v0"); A(f"v_mul_u32_u24 v1, {XT_STRIDE}, v1"); A("v_lshl_add_u32 v1, v18, 5, v1"); A("v_lshl_add_u32 v12, v16, 4, v1")
    A(f"s_lshl_b32 s8, s{sROT}, 2"); A(f"s_add_u32 s8, s8, s{sWp}"); A(f"s_mul_i32 s14, s8, {16 * XT_STRIDE}")
    A(f"s_lshl_b32 s9, s{sTB}, 7"); A("s_add_u32 s14, s14, s9"); A(f"s_add_u32 s15, s14, {XT_STRIDE}")
    A("s_lshl_b32 s8, s8, 12"); A(f"s_add_u32 s{sF1}, s8, s9"); A(f"s_add_u32 s{sF1}, s{sF1}, {WS_F1}")
    A(f"s_lshl_b32 s{sF3}, s{sID}, 4"); A(f"s_lshl_b32 s9, s{sWp}, 2"); A(f"s_add_u32 s{sF3}, s{sF3}, s9"); A(f"s_add_u32 s{sF3}, s{sF3}, {WS_F3}")
    A.c("exchange addresses v249 (write) v250 (read); K plane write address v251")
    A(f"s_lshl_b32 s8, s{sWp}, 11"); A("s_xor_b32 s9, s8, 2048"); A(f"s_add_u32 s8, s8, {L_EX}"); A(f"s_add_u32 s9, s9, {L_EX}")
    A("v_lshl_add_u32 v249, v0, 4, s8"); A("v_lshl_add_u32 v250, v0, 4, s9")
    A("v_and_b32 v1, 3, v0"); A("v_mul_u32_u24 v1, 1536, v1"); A("v_lshrrev_b32 v16, 2, v0"); A("v_lshl_add_u32 v1, v16, 4, v1")
    A(f"v_add_u32 v251, s{sKXb}, v1")
    A("s_mov_b32 s10, 0xaaaaaaaa"); A("s_mov_b32 s11, 0xaaaaaaaa")

    def cmul(d, a, b):
        A(f"v_pk_mul_f32 {vr(d,2)}, {vr(a,2)}, {vr(b,2)} op_sel:[0,0] op_sel_hi:[1,0]")
        A(f"v_pk_fma_f32 {vr(d,2)}, {vr(a,2)}, {vr(b,2)}, {vr(d,2)} op_sel:[1,1,0] op_sel_hi:[0,1,1] neg_lo:[0,1,0]")
    Z1, Z256, Z2, Z4 = 32, 34, 36, 38
    YV, XV, PK = 128, 192, 56
    Z8 = YV + 2
    xl = [0, 1, 2, 3, 4, 5, 6, 7, 256, 258, 260, 262, 264, 512, 516, 520, 768, 772, 776, 1024, 1032, 1280, 1288, 1536, 1544, 1792, 1800]
    XR = {l: XV + 2 * i for i, l in enumerate(xl)}
    A(f"v_mov_b32 v{YV}, 1.0"); A(f"v_mov_b32 v{YV+1}, 0")
    A.c("parameters")
    A.wait(vm="par")
    stamp("par")
    for r in (pL, pAr, pAi): A(f"v_lshlrev_b32 v{r}, 16, v{r}")
    L2E = math.log2(math.e)
    l2e_hi = struct.unpack("<f", struct.pack("<f", L2E))[0]; l2e_lo = L2E - l2e_hi
    A(f"s_mov_b32 s8, {f32(l2e_hi)}")
    A(f"v_mul_f32 v16, s8, v{pL}")
    A(f"v_fma_f32 v17, v{pL}, s8, -v16")
    A(f"v_fmac_f32 v17, {f32(l2e_lo)}, v{pL}")
    A("v_exp_f32 v16, v16")
    A(f"v_mul_f32 v17, {f32(math.log(2))}, v17")
    A("v_fmac_f32 v16, v16, v17")
    A("v_cvt_pk_bf16_f32 v16, v16, v16")
    A(f"v_lshlrev_b32 v{pL}, 16, v16")
    A(f"v_mul_f32 v{pAr}, v{pL}, v{pAr}"); A(f"v_mul_f32 v{pAi}, v{pL}, v{pAi}")
    A(f"v_mul_f32 v{pAr}, s8, v{pAr}")
    A(f"v_mul_f32 v{pAi}, 0.15915494, v{pAi}")
    def zpow(z, p):
        if p != 1.0:
            A(f"v_mul_f32 v16, {f32(p)}, v{pAr}"); A(f"v_mul_f32 v17, {f32(p)}, v{pAi}")
            A("v_exp_f32 v16, v16"); A("v_fract_f32 v17, v17")
        else:
            A(f"v_exp_f32 v16, v{pAr}"); A(f"v_fract_f32 v17, v{pAi}")
        A(f"v_cos_f32 v{z}, v17"); A(f"v_sin_f32 v{z+1}, v17")
        A(f"v_mul_f32 v{z}, v16, v{z}"); A(f"v_mul_f32 v{z+1}, v16, v{z+1}")
    YF, XFr, KA = 64, 96, 32
    def pack(dst, jj, part, regs, neg):
        t = dst + 16 * part + 4 * jj
        sg = "-" if (neg and part) else ""
        for i in range(4): A(f"v_cvt_pk_bf16_f32 v{t+i}, {sg}v{regs[2*i]+part}, {sg}v{regs[2*i+1]+part}")
    def twrite(src, jj, part): A(f"ds_write_b128 v{vTW + 4*part + jj}, {vr(src + 16*part + 4*jj, 4)}")
    X = lambda l, src, z: cmul(XR[l], XR[src], z)
    Y = lambda m: cmul(YV + 2*m, YV + 2*(m - 1), Z8)
    def treads(dst, tag):
        for ks in range(8):
            for i in range(2): A(f"ds_read_b64_tr_b16 {vr(dst+4*ks+2*i,2)}, v{vTR+i} offset:{1024*ks + 256*i}", (tag, ks))
    yr = lambda jj: [YV + 2 * (8 * jj + i) for i in range(8)]
    xr = [[XR[l] for l in t] for t in ((0, 1, 2, 3, 256, 256, 258, 260), (4, 5, 6, 7, 260, 260, 262, 264),
                                       (512, 516, 520, 1024, 768, 772, 776, 1280), (1032, 1536, 1544, 1544, 1288, 1792, 1800, 1800))]
    A.c("tables: Y = z^(8m), X = c z^l1; K[l1 + 8m] = Re sum_n X Y")
    zpow(Z8, 8.0)
    for m in range(2, 8): Y(m)
    for jj in range(4):
        for part in range(2):
            pack(YF, jj, part, yr(jj), False)
            if cfg.kearly >= 1: twrite(YF, jj, part)
            if jj < 3:
                for m in range(8*jj + 8 + 4*part, 8*jj + 12 + 4*part): Y(m)
            elif part == 0:
                zpow(Z1, 1.0)
    zpow(Z256, 256.0)
    if cfg.kearly >= 1: treads(YF, "y")
    cmul(Z2, Z1, Z1); cmul(Z4, Z2, Z2)
    A.wait(vm="par2")
    for r in (pBr, pBi, pCr, pCi, pD): A(f"v_lshlrev_b32 v{r}, 16, v{r}")
    A(f"v_mul_f32 v{pBr}, v{pL}, v{pBr}"); A(f"v_mul_f32 v{pBi}, v{pL}, v{pBi}")
    cmul(XR[0], pCr, pBr)
    X(1, 0, Z1); X(2, 1, Z1); X(3, 2, Z1); X(256, 0, Z256); X(258, 256, Z2); X(260, 256, Z4)
    tag_finish()
    seq = [[(4, 0, Z4), (5, 1, Z4), (6, 2, Z4)], [(7, 3, Z4), (262, 260, Z2), (264, 256, Z8)],
           [(512, 256, Z256), (516, 512, Z4), (520, 512, Z8), (768, 512, Z256)], [(772, 768, Z4), (776, 768, Z8), (1024, 768, Z256), (1280, 1024, Z256)],
           [(1032, 1024, Z8), (1288, 1280, Z8), (1536, 1280, Z256)], [(1544, 1536, Z8), (1792, 1536, Z256), (1800, 1792, Z8)], [], []]
    for jj in range(4):
        for part in range(2):
            if cfg.kearly >= 2:
                pack(XFr, jj, part, xr[jj], True); twrite(XFr, jj, part)
            for a_ in seq[2*jj + part]: X(*a_)
    def kprod():
        treads(XFr, "x")
        for ks in range(8):
            A.wait(lg=[("x", ks)])
            A(f"v_mfma_f32_32x32x16_bf16 {vr(KA,16)}, {vr(XFr+4*ks,4)}, {vr(YF+4*ks,4)}, {'0' if ks == 0 else vr(KA,16)}")
    if cfg.kearly >= 2: kprod()
    A("s_setprio 1")
    barrier("B0")
    A.c("transpose this workgroup's first x chunk; keep the ring fed")
    XT0, XT1 = 128, 136
    def xt_job(b):
        n = len(A.vm)
        if b == 1 and not cfg.noxt:
            for j in range(2): A(f"buffer_store_dwordx4 {vr(XT1+4*j,4)}, v12, {WS}, s{14+j} offen {HS}")
        if b == 3: gflag(sF1, 1, HS)
        del A.vm[n:]
    for i in range(4): A(f"ds_read_b64_tr_b16 {vr(XT0+2*i,2)}, v{8+i} offset:{512*i}")
    step_dmas(2)
    A("s_not_b64 vcc, s[10:11]")
    A("s_waitcnt lgkmcnt(0)")
    for k in range(4): A(f"v_cndmask_b32_dpp v{XT1+k}, v{XT0+4+k}, v{XT0+k}, vcc quad_perm:[1,0,3,2] row_mask:0xf bank_mask:0xf")
    A("s_mov_b64 vcc, s[10:11]")
    for k in range(4): A(f"v_cndmask_b32_dpp v{XT1+4+k}, v{XT0+k}, v{XT0+4+k}, vcc quad_perm:[1,0,3,2] row_mask:0xf bank_mask:0xf")
    barrier("B1")
    step_dmas(3); xt_job(1)
    A.wait(vm=[("st", 2)])
    barrier("B2")
    step_dmas(4)
    if cfg.kearly < 2:
        for jj in range(2):
            for part in range(2): pack(XFr, jj, part, xr[jj], True)
    A.wait(vm=[("st", 3)])
    barrier("B3")
    step_dmas(5); xt_job(3)
    if cfg.kearly < 2:
        for jj in range(2, 4):
            for part in range(2): pack(XFr, jj, part, xr[jj], True)
    A.wait(vm=[("st", 4)])
    barrier("B4")
    step_dmas(6)
    A.c("Dskip only on lane 0")
    A("v_cmp_eq_u32 vcc, 0, v0"); A(f"v_cndmask_b32 v{pD}, 0, v{pD}, vcc")
    A.wait(vm=[("st", 5)])
    barrier("B5")
    step_dmas(7)
    A("v_and_b32 v17, 31, v0"); A("v_lshlrev_b32 v17, 7, v17")
    A(f"s_lshr_b32 s15, s{sCH}, 4"); A("s_lshl_b32 s15, s15, 12"); A(f"s_add_u32 s15, s15, {WS_F1}")
    A.c("conv addresses")
    vUA, vKB, vUW = 252, 253, 10
    A("v_and_b32 v1, 3, v0"); A("v_sub_u32 v1, 3, v1"); A("v_mul_u32_u24 v1, 4160, v1")
    A("v_bfe_u32 v2, v0, 2, 1"); A("v_lshl_add_u32 v1, v2, 5, v1")
    A("v_bfe_u32 v2, v0, 3, 2"); A("v_lshl_add_u32 v1, v2, 3, v1")
    A("v_lshrrev_b32 v2, 5, v0"); A("v_lshl_add_u32 v1, v2, 4, v1")
    A(f"s_lshl_b32 s9, s{sNH}, 10"); A(f"s_add_u32 s8, s{sU}, s9"); A("s_add_u32 s8, s8, 8")
    A(f"v_add_u32 v{vUA}, s8, v1")
    A("v_sub_u32 v2, 1, v2"); A("v_mul_u32_u24 v2, 1536, v2"); A("v_and_b32 v1, 31, v0"); A("v_lshl_add_u32 v1, v1, 4, v2")
    A(f"s_lshl_b32 s9, s{sNH}, 8"); A(f"s_sub_u32 s8, s{sKXb}, s9")
    A(f"v_add_u32 v{vKB}, s8, v1")
    A.wait(vm=[("st", 6)])
    barrier("B6")
    pl = f"buffer_load_dword v18, v17, {WS}, s15 offen sc1"
    A(pl, "f1")
    for st in range(8 - cfg.nd, 8): step_dmas(st, "q")
    A("v_lshlrev_b32 v16, 4, v0")
    A(f"s_lshl_b32 s9, s{sNH}, 11"); A(f"s_add_u32 s8, s{sU}, s9"); A("s_add_u32 s8, s8, 64")
    A(f"v_add_u32 v{vUW}, s8, v16")
    A(f"s_mul_i32 s14, s{sCH}, {XT_STRIDE}"); A("s_add_u32 s14, s14, s9")
    A(f"s_lshl_b32 s9, s{sNH}, 3"); A("s_sub_u32 s101, s14, s9")
    A(f"s_lshl_b32 s13, s{sCHL}, 2"); A(f"s_add_u32 s12, s13, {L_FL + FL_CV}"); A(f"s_add_u32 s{sF1}, s13, {L_FL + FL_P1}"); A(f"s_add_u32 s13, s13, {L_FL + FL_P2}")
    A.wait(vm=[("st", 7)])
    barrier("B7")
    UD, UP = 128, 136
    def uloads():
        for i in range(2): A(f"buffer_load_dwordx4 {vr(UD+4*i,4)}, v16, {WS}, s14 offen offset:{1024*i} sc1")
        A(f"buffer_load_dwordx2 {vr(UP,2)}, off, {WS}, s101 sc1")
    A.c("if the 32 slices of this channel's row are already out, fetch this wave's half now")
    A.wait(vm="f1")
    A(f"v_cmp_ne_u32 vcc, s{sTAG}, v18")
    A(f"s_or_b32 s{sSLOW}, vcc_lo, vcc_hi")
    def f0():
        uloads(); A("s_waitcnt vmcnt(3)")
    def f1():
        A("s_waitcnt vmcnt(0)")
    two_way(sSLOW, f0, f1)
    barrier("B8")
    if cfg.p1only:
        dump_stamps(); A("s_endpgm")
    A(f"s_setprio {cfg.kgenprio}")
    A.c("LDS writes resume now that the DMA stream and its readers are done")
    for part in range(2):
        for jj in range(4): twrite(YF, jj, part)
    stamp("t1", 3)
    treads(YF, "y")
    for part in range(2):
        for jj in range(4): twrite(XFr, jj, part)
    stamp("t2", 3)
    treads(XFr, "x")
    lb = A.newlabel("uok")
    A(f"s_cmp_eq_u32 s{sSLOW}, 0"); A(f"s_cbranch_scc1 {lb}")
    poll(pl, 18, sleep=2)
    uloads()
    A.label(lb)
    A("s_waitcnt vmcnt(0)")
    stamp("uld", 2)
    UV = []; UWr = []
    for k in range(2): UV.append(f"v_mul_lo_u32 v{UP+k}, v{UP+k}, s{sNH}")
    for k in range(2): UV.append(f"v_mov_b32_dpp v{UP+2+k}, v{UD+2+k} wave_ror:1 row_mask:0xf bank_mask:0xf")
    for i in range(2):
        d = UD + 4 * i; p = UP + 2 * i; o = 144 + 12 * i
        for k in range(2): UV.append(f"v_mov_b32_dpp v{p+k}, v{d+2+k} wave_shr:1 row_mask:0xf bank_mask:0xf")
        sq = [p, p + 1, d, d + 1, d + 2, d + 3]
        for k in (3, 2, 1, 0): UV.append(f"v_alignbit_b32 v{o+k}, v{sq[k+2]}, v{sq[k+1]}, 16")
        for k in range(4): UV.append(f"v_mov_b32 v{o+4+k}, v{sq[k+1]}")
        for k in range(4): UV.append(f"v_alignbit_b32 v{o+8+k}, v{sq[k+1]}, v{sq[k]}, 16")
        UWr += [f"ds_write_b128 v{vUW}, {vr(r,4)} offset:{4160*c + 1024*i}" for c, r in enumerate((d, o, o + 4, o + 8))]
    for ks in range(8):
        A.wait(lg=[("x", ks)])
        A(f"v_mfma_f32_32x32x16_bf16 {vr(KA,16)}, {vr(XFr+4*ks,4)}, {vr(YF+4*ks,4)}, {'0' if ks == 0 else vr(KA,16)}")
        for _ in range(4): A(UV.pop(0))
    stamp("t3", 3)
    for _ in range(2): A(UWr.pop(0))
    def f0():
        A(f"ds_write_b128 v249, {vr(KA+8,4)}"); A(f"ds_write_b128 v249, {vr(KA+12,4)} offset:1024")
        A(f"v_add_f32 v{KA}, v{KA}, v{pD}")
    def f1():
        A(f"ds_write_b128 v249, {vr(KA,4)}"); A(f"ds_write_b128 v249, {vr(KA+4,4)} offset:1024")
    two_way(sNH, f0, f1)
    lds_signal(f"s{sF1}", 1)
    for _ in range(3): A(UWr.pop(0))
    lds_wait(f"s{sF1}", 2, 1)
    stamp("t4", 3)
    A("ds_read_b128 v[52:55], v250"); A("ds_read_b128 v[56:59], v250 offset:1024")
    for _ in range(3): A(UWr.pop(0))
    A.c("finish K: add the partner's half, expand to the 2048 taps")
    A("s_waitcnt lgkmcnt(3)")
    def f0():
        for r in range(8): A(f"v_add_f32 v{KA+r}, v{KA+r}, v{52+r}")
        for i in range(4): A(f"v_cvt_pk_bf16_f32 v{52+i}, v{KA+7-2*i}, v{KA+6-2*i}")
        A("ds_write_b128 v251, v[52:55] offset:512")
    def f1():
        for r in range(7): A(f"v_add_f32 v{KA+8+r}, v{KA+8+r}, v{52+r}")
        a, b, c = KA + 8, KA + 9, KA + 10
        for i, (p, q_) in enumerate(((c, c), (b, b), (b, a), (a, a))): A(f"v_cvt_pk_bf16_f32 v{52+i}, v{p}, v{q_}")
        A(f"ds_write_b128 v251, v[52:55] offset:{512 + 2*128}")
        for e in range(2):
            a, b = KA + 11 + 2 * e, KA + 12 + 2 * e
            t = 56 + 4 * e
            A(f"v_cndmask_b32 v{KA}, v{a}, v{b}, s[10:11]")
            for i, (p, q_) in enumerate(((b, b), (b, KA), (a, a), (a, a))): A(f"v_cvt_pk_bf16_f32 v{t+i}, v{p}, v{q_}")
            A(f"ds_write_b128 v251, {vr(t,4)} offset:{512 + (4 + 2*e)*128}")
    two_way(sNH, f0, f1)
    lds_signal("s13", 1)
    stamp("t5", 3)
    A.c("conv exchange goes through this wave's own table space")
    A(f"s_xor_b32 s8, s{sTAB}, 8192"); A(f"v_add_u32 v246, s{sTAB}, v16"); A("v_add_u32 v247, s8, v16")
    A("v_and_b32 v1, 31, v0"); A("v_lshlrev_b32 v1, 6, v1"); A("v_lshrrev_b32 v2, 5, v0"); A("v_lshl_add_u32 v248, v2, 5, v1")
    A(f"s_lshl_b32 s14, s{sCH}, 12"); A(f"s_lshl_b32 s9, s{sNH}, 11"); A("s_add_u32 s14, s14, s9"); A(f"s_add_u32 s14, s14, {WS_AT}")
    lds_wait("s13", 2, 1)
    stamp("conv0")
    C0, C1, CF = 144, 160, 176
    def creads(sg):
        if sg >= 32: return []
        b = CF + 16 * (sg % 3)
        ko = (3072 if sg % 2 == 0 else 0) + (32 - (sg >> 1)) * 16
        T = [f"ds_read_b64 {vr(b,2)}, v{vUA} offset:{32*sg}", f"ds_read_b64 {vr(b+2,2)}, v{vUA} offset:{32*sg+8}",
             f"ds_read_b128 {vr(b+8,4)}, v{vKB} offset:{ko+512}", f"ds_read_b128 {vr(b+12,4)}, v{vKB} offset:{ko}",
             f"ds_read_b64 {vr(b+4,2)}, v{vUA} offset:{2048+32*sg}", f"ds_read_b64 {vr(b+6,2)}, v{vUA} offset:{2048+32*sg+8}"]
        return [lambda t=t: A(t, ("c", sg)) for t in T]
    def cmm(sg):
        b = CF + 16 * (sg % 3)
        def m0():
            A.wait(lg=[("c", sg)])
            A(f"v_mfma_f32_32x32x16_bf16 {vr(C1,16)}, {vr(b,4)}, {vr(b+8,4)}, {'0' if sg == 0 else vr(C1,16)}")
        return [m0, lambda: A(f"v_mfma_f32_32x32x16_bf16 {vr(C0,16)}, {vr(b,4)}, {vr(b+12,4)}, {'0' if sg == 0 else vr(C0,16)}"),
                lambda: A(f"v_mfma_f32_32x32x16_bf16 {vr(C1,16)}, {vr(b+4,4)}, {vr(b+12,4)}, {vr(C1,16)}")]
    A(f"s_setprio {cfg.convprio}")
    for f in creads(0) + creads(1): f()
    setup = attn_setup()
    per = -(-len(setup) // max(cfg.n0, 1) // 2)
    NS = cfg.n0 + cfg.n1
    for sg in range(NS):
        if sg == cfg.n0:
            for t in setup: A(t)
            setup = []
            attn_start()
        m = cmm(sg)
        m[0]()
        for f in creads(sg + 2): f()
        for k in (1, 2):
            m[k]()
            for _ in range(per):
                if setup: A(setup.pop(0))
    stamp("conv1")
    A(f"s_setprio {cfg.prio[1][0][1]}")
    A.wait(vm=[("k", 0)], lg="qf")
    stamp("att0")
    qk("A", 0)
    A.c("the rest of the conv is woven into this wave's first attention tiles")
    sg = NS; i = 0
    while sg < 32:
        X = {}
        slots = [(8, 14, 24)] if cfg.cs == 1 else [(0, 8, 13), (16, 24, 29)]
        for sl in slots:
            if sg >= 32: break
            m = cmm(sg); r = creads(sg + 2)
            for k in range(3): X.setdefault(sl[k], []).append(m[k])
            for k in range(3):
                if r: X.setdefault(sl[k] + 1, []).extend(r[2*k:2*k+2])
            sg += 1
        tile(i, X); i += 1
    def wr(send): return lambda: [A(f"ds_write_b128 v246, {vr(send+4*k,4)} offset:{1024*k}") for k in range(4)]
    def e0():
        two_way(sNH, wr(C1), wr(C0))
        lds_signal("s12", 244)
    tile(i, {12: [e0]}); i += 1
    def e1():
        lds_wait("s12", 2, 244)
        for k in range(4): A(f"ds_read_b128 {vr(CF+4*k,4)}, v247 offset:{1024*k}")
    def fin(keep):
        def f():
            for r in range(16): A(f"v_add_f32 v{keep+r}, v{keep+r}, v{CF+r}")
            for k in range(8): A(f"v_cvt_pk_bf16_f32 v{224+k}, v{keep+2*k}, v{keep+2*k+1}")
        return f
    def e2():
        A("s_waitcnt lgkmcnt(0)")
        two_way(sNH, fin(C0), fin(C1))
        n = len(A.vm)
        A(f"buffer_store_dwordx4 {vr(224,4)}, v248, {WS}, s14 offen sc1")
        A(f"buffer_store_dwordx4 {vr(228,4)}, v248, {WS}, s14 offen offset:16 sc1")
        del A.vm[n:]
        stamp("convdone")
    tile(i, {12: [e1], 28: [e2]}); i += 1
    JM = i
    s_vm = list(A.vm)
    A("s_branch L_merge")

    A.label("L_attn")
    A.reset(); A.vm, A.lg = g_state
    def prio_point(n):
        T = []
        for kh in range(2):
            for tn, p in cfg.prio[kh]:
                if tn is not None and 2 * NT - tn == n:
                    assert n >= 2 * JM
                    def f(kh=kh, p=p):
                        lb = A.newlabel("pr")
                        A(f"s_cmp_lg_u32 s{sKH}, {kh}"); A(f"s_cbranch_scc1 {lb}")
                        h = list(A.hist); A(f"s_setprio {p}"); A.hist = h
                        A.label(lb)
                    T.append(f)
        return T
    A(f"s_setprio {cfg.prio[0][0][1]}")
    A.wait(vm=[("k", 0)], lg="qf")
    stamp("att0")
    qk("A", 0)
    assert JM <= wo_at[0] and JM + P - 1 <= J1
    for i in range(NT):
        if i == JM:
            assert A.vm == s_vm
            A.label("L_merge")
        X = {0: prio_point(2 * i), 16: prio_point(2 * i + 1), 12: [], 19: [], 20: []}
        if i == JM + P - 1:
            def f3():
                lb = A.newlabel("nof3")
                A(f"s_cmp_eq_u32 s{sKH}, 0"); A(f"s_cbranch_scc1 {lb}")
                h = list(A.hist)
                gflag(sF3, 1)
                A.vm.pop(); A.hist = h
                A.label(lb)
            X[0].append(f3)
        if i == J1: X[12] += [lambda l=l: A(l, "side") for l in side_ld]
        if i == J2:
            def sj():
                side_cmp()
                A("s_cbranch_vccnz L_side_slow")
                A.label("L_side_ok")
                A(f"v_cmp_ne_u32 vcc, s{sXCC}, v131")
                A(f"s_add_u32 m0, s{sWOl}, {L_QF}")
                A(f"s_or_b32 s{sSLOW}, vcc_lo, vcc_hi")
                A(f"buffer_load_dwordx4 v{vAT}, {WS}, s{sATo} offen sc1 lds")
            X[12].append(sj)
        if J2 <= i < J2 + 2:
            X[12] += [lambda k=k: A(f"buffer_load_dword v{ZP+k}, v{vZA}, {WS}, s{sZo} offen offset:{256*k} sc1") for k in range(4*(i - J2), 4*(i - J2) + 4)]
        if i in wo_at:
            X[19].append(lambda r=wo_at.index(i): A(f"s_add_u32 m0, s{sWOl}, {8192*r}"))
            X[20].append(lambda: A(f"buffer_load_dwordx4 v{vWO}, s[{rWO}:{rWO+3}], s{sWOo} offen lds", "wo"))
            X[20].append(lambda: A(f"s_add_u32 s{sWOo}, s{sWOo}, 0x10000"))
        tile(i, X)
    sm("B", NT - 1, 1)
    A("s_setprio 3")
    stamp("att1")
    A.c("pair exchange: kh=0 finishes q-tile A, kh=1 q-tile B")
    A(f"s_lshl_b32 s8, s{sA}, 11"); A(f"s_add_u32 s10, s8, {L_OX0}"); A(f"s_add_u32 s11, s8, {L_OX1}")
    A(f"s_lshl_b32 s12, s{sW}, 8"); A(f"s_xor_b32 s13, s12, 1024"); A(f"s_add_u32 s12, s12, {L_EX}"); A(f"s_add_u32 s13, s13, {L_EX}")
    A("v_lshl_add_u32 v18, v0, 2, s12"); A("v_lshl_add_u32 v19, v0, 2, s13")
    A(f"v_add_u32 v16, s10, v{vKo}"); A(f"v_add_u32 v17, s11, v{vKo}")
    def f0():
        A(f"ds_write_b128 v16, {vr(O['B'],4)}"); A(f"ds_write_b128 v16, {vr(O['B']+4,4)} offset:1024"); A(f"ds_write_b32 v18, v{O['B']+8}")
    def f1():
        A(f"ds_write_b128 v17, {vr(O['A'],4)}"); A(f"ds_write_b128 v17, {vr(O['A']+4,4)} offset:1024"); A(f"ds_write_b32 v18, v{O['A']+8}")
        A("s_waitcnt lgkmcnt(0)")
        for r in range(9): A(f"v_mov_b32 v{O['A']+r}, v{O['B']+r}")
        for r in range(4): A(f"v_mov_b32 v{Q['A']+r}, v{Q['B']+r}")
        A("v_mov_b32 v17, v16")
    two_way(sKH, f0, f1)
    A(f"s_lshl_b32 s10, s{sHG}, 3"); A(f"s_lshl_b32 s11, s{sA}, 1"); A("s_add_u32 s10, s10, s11"); A(f"s_add_u32 s10, s10, s{sKH}")
    A(f"s_lshl_b32 s11, s{sTB}, 6"); A("s_add_u32 s10, s10, s11")
    A("s_lshl_b32 s14, s10, 10"); A(f"s_add_u32 s14, s14, {WS_OF}")
    A("s_lshl_b32 s15, s10, 7"); A(f"s_add_u32 s15, s15, {WS_F4}")
    A(f"s_mov_b32 s8, {f32(2.0**-24)}"); A(f"s_mov_b32 s9, {f32(2.0**48)}"); A(f"s_mov_b32 s10, {f32(2.0**120)}")
    A("s_waitcnt vmcnt(0) lgkmcnt(0)")
    barrier("Ba")
    OA = O["A"]
    A("ds_read_b32 v28, v19"); A("ds_read_b128 v[20:23], v17"); A("ds_read_b128 v[24:27], v17 offset:1024")
    A("s_waitcnt lgkmcnt(0)")
    for r in range(9): A(f"v_add_f32 v{OA+r}, v{OA+r}, v{20+r}")
    A.c("the un-shifted exponentials are exact only while the row sum is far from overflow / underflow; else redo with the true row max")
    A(f"v_max3_f32 v20, abs(v{OA}), abs(v{OA+1}), abs(v{OA+2})")
    A(f"v_max3_f32 v21, abs(v{OA+3}), abs(v{OA+4}), abs(v{OA+5})")
    A(f"v_max3_f32 v20, abs(v{OA+6}), abs(v{OA+7}), v20")
    A("v_max_f32 v20, v20, v21")
    A(f"v_cmp_nle_f32 s[12:13], s8, v{OA+8}")
    A(f"v_cmp_nge_f32 s[92:93], s9, v{OA+8}")
    A("v_cmp_nge_f32 vcc, s10, v20")
    A("s_or_b64 s[12:13], s[12:13], s[92:93]")
    A("s_or_b64 s[12:13], s[12:13], vcc")
    if cfg.force_fallback: A("s_branch L_fallback")
    A("s_cbranch_scc1 L_fallback")
    A.label("L_norm")
    A(f"v_rcp_f32 v20, v{OA+8}")
    for r in range(8): A(f"v_mul_f32 v{OA+r}, v20, v{OA+r}")
    for i in range(4): A(f"v_cvt_pk_bf16_f32 v{20+i}, v{OA+2*i}, v{OA+2*i+1}")
    A.c("all eight workgroups of this token block on one die: hand O over through its L2; otherwise write through")
    def ost(sc): return lambda: A(f"buffer_store_dwordx4 v[20:23], v{vKo}, {WS}, s14 offen {sc}")
    def oflag():
        A("s_waitcnt vmcnt(0)")
        A("s_mov_b64 exec, 1")
        A(f"v_mov_b32 v1, s{sTAG}")
        f = lambda sc: (lambda: A(f"buffer_store_dword v1, off, {WS}, s15 {sc}"))
        if cfg.fast: two_way(sSLOW, f(""), f("sc1"))
        else: f("sc1")()
        A("s_mov_b64 exec, -1")
        stamp("oflag")
    if cfg.fast: two_way(sSLOW, ost(""), ost("sc1"))
    else: ost("sc1")()
    stamp("ost")
    A(f"s_cmp_lg_u32 s{sKH}, 0"); A("s_cbranch_scc1 L_tail_b")

    WOF, OFR, AC, GA = 128, 64, 32, 16
    A.c("gate logit")
    for k in (4, 2, 1):
        for r in range(k): A(f"v_add_f32 v{ZP+r}, v{ZP+r}, v{ZP+k+r}")
    A(f"v_mov_b32 v{vG}, v{ZP}")
    A(f"v_permlane32_swap_b32 v{vG}, v{ZP}")
    A(f"v_add_f32 v{vG}, v{vG}, v{ZP}")
    A.c("wo fragments -> registers while the stores drain")
    A("v_lshrrev_b32 v2, 5, v0"); A("v_bfe_u32 v1, v0, 2, 2"); A("v_lshl_add_u32 v4, v2, 2, v1"); A("v_lshlrev_b32 v4, 7, v4")
    A("v_lshl_add_u32 v6, v2, 4, v1"); A("v_lshlrev_b32 v6, 7, v6")
    A("v_and_b32 v1, 1, v0"); A("v_lshl_add_u32 v4, v1, 5, v4"); A("v_lshl_add_u32 v6, v1, 3, v6")
    A("v_bfe_u32 v1, v0, 4, 1"); A("v_lshl_add_u32 v4, v1, 4, v4"); A("v_lshl_add_u32 v6, v1, 5, v6")
    A("v_bfe_u32 v1, v0, 1, 1"); A("v_lshl_add_u32 v4, v1, 3, v4"); A("v_lshl_add_u32 v6, v1, 4, v6")
    A("v_bfe_u32 v1, v0, 3, 1"); A("v_lshl_add_u32 v4, v1, 6, v4")
    A(f"v_xor_b32 v1, s{sTT}, v1"); A("v_lshl_add_u32 v6, v1, 6, v6")
    A(f"s_lshl_b32 s8, s{sHP}, 15"); A("v_add_u32 v4, s8, v4"); A("v_xor_b32 v5, 64, v4")
    A(f"s_lshl_b32 s8, s{sHP}, 12"); A(f"s_add_u32 s8, s8, {L_QF}"); A("v_add_u32 v6, s8, v6")
    def wo_reads(f0, f1):
        for f in range(f0, f1):
            for ct in range(2):
                for i in range(2):
                    A(f"ds_read_b64_tr_b16 {vr(WOF + 8*f + 4*ct + 2*i, 2)}, v{4+ct} offset:{(f >> 2)*8192 + (16*(f & 3) + 8*i)*128}", ("w", f))
    A(f"s_lshl_b32 s10, s{sTB}, 8"); A(f"s_lshl_b32 s11, s{sHP}, 7"); A("s_add_u32 s10, s10, s11"); A(f"s_lshl_b32 s11, s{sTT}, 2"); A("s_add_u32 s10, s10, s11")
    A("s_lshl_b32 s14, s10, 8"); A(f"s_add_u32 s14, s14, {WS_OF}"); A("s_lshl_b32 s76, s10, 5"); A(f"s_add_u32 s76, s76, {WS_F4}")
    A("v_and_b32 v12, 15, v0"); A("v_lshlrev_b32 v12, 8, v12")
    oflag()
    pl = f"buffer_load_dword v14, v12, {WS}, s76 offen sc1"
    A(pl)
    for i in range(4): A(f"ds_read_b64_tr_b16 {vr(GA+8+2*i,2)}, v6 offset:{512*i}", "a")
    wo_reads(0, cfg.wo0)
    A(f"s_lshl_b32 s8, s{sW}, 12"); A(f"s_add_u32 s10, s8, {L_CONVX}"); A("s_xor_b32 s8, s8, 8192"); A(f"s_add_u32 s11, s8, {L_CONVX}")
    A(f"v_add_u32 v7, s10, v{vKo}"); A(f"v_add_u32 v8, s11, v{vKo}")
    A("v_and_b32 v1, 31, v0"); A("v_lshlrev_b32 v1, 6, v1"); A("v_lshrrev_b32 v2, 5, v0"); A("v_lshl_add_u32 v1, v2, 5, v1"); A("v_add_u32 v9, s11, v1")
    A("v_lshrrev_b32 v1, 2, v0"); A("v_lshlrev_b32 v1, 10, v1"); A("v_and_b32 v2, 3, v0"); A("v_lshl_add_u32 v10, v2, 4, v1")
    A(f"s_lshl_b32 s12, s{sTB}, 16"); A(f"s_lshl_b32 s8, s{sTT}, 15"); A("s_add_u32 s12, s12, s8"); A(f"s_lshl_b32 s8, s{sHG}, 7"); A("s_add_u32 s12, s12, s8")
    A(f"s_lshl_b32 s8, s{sHP}, 6"); A("s_add_u32 s12, s12, s8"); A("s_add_u32 s13, s12, 0x4000")
    A(f"v_mul_f32 v{vG}, {f32(-math.log2(math.e))}, v{vG}")
    A(f"v_exp_f32 v{vG}, v{vG}")
    A(f"v_add_f32 v{vG}, 1.0, v{vG}")
    A(f"v_rcp_f32 v{vG}, v{vG}")
    A(f"v_sub_f32 v11, 1.0, v{vG}")
    poll(pl, 14, sleep=0, first_issued=True)
    stamp("ordy")
    def oload(f):
        A(f"buffer_load_dwordx4 {vr(OFR+4*f,4)}, v{vKo}, {WS}, s14 offen offset:{(f & 1)*2048} {cfg.osc}", ("o", f))
        if f & 1 and f < 15: A("s_add_u32 s14, s14, 4096")
    LA = cfg.ola
    nw = cfg.wo0
    for f in range(LA):
        oload(f)
        if nw < 16: wo_reads(nw, nw + 1); nw += 1
    for f in range(16):
        A.wait(vm=[("o", f)], lg=[("w", f), "a"])
        A(f"v_mfma_f32_32x32x16_bf16 {vr(AC,16)}, {vr(WOF+8*f,4)}, {vr(OFR+4*f,4)}, {'0' if f == 0 else vr(AC,16)}")
        if f + LA < 16: oload(f + LA)
        A(f"v_mfma_f32_32x32x16_bf16 {vr(AC+16,16)}, {vr(WOF+8*f+4,4)}, {vr(OFR+4*f,4)}, {'0' if f == 0 else vr(AC+16,16)}")
        if nw < 16: wo_reads(nw, nw + 1); nw += 1
        if f >= 8:
            k = f - 8
            A(f"v_lshlrev_b32 v{GA+2*k}, 16, v{GA+8+k}")
            A(f"v_and_b32 v{GA+2*k+1}, 0xffff0000, v{GA+8+k}")
            A(f"v_mul_f32 v{GA+2*k}, v{vG}, v{GA+2*k}"); A(f"v_mul_f32 v{GA+2*k+1}, v{vG}, v{GA+2*k+1}")
    stamp("omm", 2)
    def f0():
        for i in range(4): A(f"ds_write_b128 v7, {vr(AC+16+4*i,4)} offset:{1024*i}")
    def f1():
        for i in range(4): A(f"ds_write_b128 v7, {vr(AC+4*i,4)} offset:{1024*i}")
        A("s_waitcnt lgkmcnt(0)")
        for r in range(16): A(f"v_mov_b32 v{AC+r}, v{AC+16+r}")
    two_way(sHP, f0, f1)
    A("s_waitcnt lgkmcnt(0)")
    barrier()
    stamp("Bt")
    for i in range(4): A(f"ds_read_b128 {vr(64+4*i,4)}, v8 offset:{1024*i}", ("p", i))
    for r in range(16): A(f"v_fmac_f32 v{GA+r}, v11, v{AC+r}")
    for i in range(4):
        A.wait(lg=[("p", i)])
        for r in range(4*i, 4*i+4): A(f"v_fmac_f32 v{GA+r}, v11, v{64+r}")
    for i in range(8): A(f"v_cvt_pk_bf16_f32 v{64+i}, v{GA+2*i}, v{GA+2*i+1}")
    A("ds_write_b128 v9, v[64:67]"); A("ds_write_b128 v9, v[68:71] offset:16")
    A("ds_read_b128 v[72:75], v8", "b0"); A("ds_read_b128 v[76:79], v8 offset:1024", "b1")
    A.wait(lg="b0")
    A(f"buffer_store_dwordx4 v[72:75], v10, s[{rOUT}:{rOUT+3}], s12 offen {cfg.outsc}")
    A.wait(lg="b1")
    A(f"buffer_store_dwordx4 v[76:79], v10, s[{rOUT}:{rOUT+3}], s13 offen {cfg.outsc}")
    A.c("by now every wave of the grid has read the old tag")
    lb = A.newlabel("notag")
    A(f"s_or_b32 s8, s{sID}, s{sW}"); A(f"s_cbranch_scc1 {lb}")
    A(f"s_mov_b32 s8, {WS_NONCE}")
    gflag(8, 1)
    A.label(lb)
    dump_stamps()
    A("s_endpgm")

    A.reset()
    A.label("L_tail_b")
    oflag()
    dump_stamps()
    A("s_endpgm")

    A.reset()
    A.label("L_side_slow")
    A(f"s_mov_b32 s8, {SPIN_MAX}")
    A.label("L_side_lp")
    A("s_sleep 4")
    for l in side_ld: A(l)
    A("s_waitcnt vmcnt(0)")
    side_cmp()
    A("s_cbranch_vccz L_side_ok")
    A("s_sub_u32 s8, s8, 1"); A("s_cmp_lg_u32 s8, 0"); A("s_cbranch_scc1 L_side_lp")
    A("s_branch L_side_ok")

    A.reset()
    A.label("L_fallback")
    SA, CM = S["A"], S["B"]
    A(f"s_mov_b32 s{sKV}, s{sKV0}"); A("s_mov_b32 s8, 64")
    A("v_mov_b32 v1, 0xff800000")
    A.label("L_fb1")
    A(f"buffer_load_dwordx4 {Kr(0)}, v{vKo}, {WS}, s{sKV} offen sc1")
    A("s_waitcnt vmcnt(0)")
    A(f"v_mfma_f32_32x32x16_bf16 {vr(SA,16)}, {Kr(0)}, {vr(Q['A'],4)}, 0")
    for i in range(8): A(f"v_max3_f32 v1, v1, v{SA+2*i}, v{SA+2*i+1}")
    A(f"s_add_u32 s{sKV}, s{sKV}, 2048"); A("s_sub_u32 s8, s8, 1"); A("s_cmp_lg_u32 s8, 0"); A("s_cbranch_scc1 L_fb1")
    A("v_mov_b32 v2, v1")
    A("v_permlane32_swap_b32 v1, v2")
    A("v_max_f32 v1, v1, v2")
    for r in range(16): A(f"v_sub_f32 v{CM+r}, 0, v1")
    for r in range(16): A(f"v_mov_b32 v{OA+r}, 0")
    A(f"s_mov_b32 s{sKV}, s{sKV0}"); A("s_mov_b32 s8, 64")
    A.label("L_fb2")
    A(f"buffer_load_dwordx4 {Kr(0)}, v{vKo}, {WS}, s{sKV} offen sc1")
    A(f"s_mov_b64 exec, s[{sVM}:{sVM+1}]")
    for j in range(2): A(f"buffer_load_dwordx4 {Vr(0,j)}, v{vVo}, {WS}, s{sKV} offen offset:{1024+512*j} sc1")
    A("s_mov_b64 exec, -1")
    A("s_waitcnt vmcnt(0)")
    A(f"v_mfma_f32_32x32x16_bf16 {vr(SA,16)}, {Kr(0)}, {vr(Q['A'],4)}, {vr(CM,16)}")
    ex("A", 0, 16)
    sm("A", 0, 0); sm("A", 0, 1)
    A(f"s_add_u32 s{sKV}, s{sKV}, 2048"); A("s_sub_u32 s8, s8, 1"); A("s_cmp_lg_u32 s8, 0"); A("s_cbranch_scc1 L_fb2")
    A("s_nop 15")
    A("s_branch L_norm")
    A.label("L_end")
    A("s_endpgm")
    return A

HEAD = """; fused gated mix of an S4 long convolution and a 32-head attention block (generated by gen/gen.py)
; one workgroup per CU: (head group hg of 4 heads, token block tb of 64 tokens), 8 waves
; @launch grid=(256,1,1) block=(512,1,1) lds=%d
.amdgcn_target "amdgcn-amd-amdhsa--gfx950"
.text
.globl %s
.p2align 8
.type %s,@function
""" % (LDS_BYTES, NAME, NAME)
TAIL = """.section .rodata,"a"
.p2align 6
.amdhsa_kernel %s
  .amdhsa_next_free_vgpr 256
  .amdhsa_next_free_sgpr 102
  .amdhsa_accum_offset 256
  .amdhsa_group_segment_fixed_size 0
  .amdhsa_kernarg_size 128
  .amdhsa_user_sgpr_count 2
  .amdhsa_user_sgpr_kernarg_segment_ptr 1
  .amdhsa_system_sgpr_workgroup_id_x 1
.end_amdhsa_kernel
""" % NAME

def build(**kw):
    cfg = Cfg()
    for k, v in kw.items(): setattr(cfg, k, v)
    A = gen(cfg)
    return HEAD + A.text() + TAIL

if __name__ == "__main__":
    kw = {}
    out = "gated_mix__ssm_conv_s4__mha_block__prompt.s"
    for a in sys.argv[1:]:
        k, v = a.split("=", 1)
        if k == "out": out = v
        else: kw[k] = eval(v)
    open(out, "w").write(build(**kw))
    print("wrote", out)
```

```python
import sys, struct, math
from asmlib import Asm, vr, sr

NAME = "gated_mix__ssm_conv_s4__mha_block__prompt_kernel"
def f32(x): return "0x%08x" % struct.unpack("<I", struct.pack("<f", x))[0]

XT_STRIDE = 4224
WS_XT = 0
WS_KV = 0x220000
WS_AT = 0x620000
WS_OF = 0x820000
WS_F2 = 0xC00000
WS_F4 = 0xA40000
WS_F3 = 0xA80000
WS_NONCE = 0xA82000
WS_F1 = 0xA90000
WS_LF = 0xA88000
WS_FX = 0xA84000
WS_Z = 0xAB0000
WS_STAMP = 0xAD0000
WS_SIZE = 0xF00000
SLOT = 32768
L_SSM = 98304
SSM_CH = 16640
L_KX = 131584
L_QF = 143872
L_EX = 152064
L_MISC = 161792
L_GW = L_MISC
L_FL = L_MISC + 1024
FL_Q, FL_KD, FL_P1, FL_P2, FL_CV, FL_KR, FL_K2 = 0, 4, 8, 16, 24, 32, 36
L_TAB = 65536
L_CONVX = 124928
L_OX = 65536
LDS_BYTES = 163840

sW, sHG, sTB, sROT, sID = 3, 4, 5, 6, 7
pX, pAre, pAim, pBre, pBim, pCre, pCim, pLdt, pDsk, pBx, pWqkv, pWo, pGate, pOut, pDbg, pWs = [16 + 2 * i for i in range(16)]
rX, rW, rWS, rWO, rOUT = 48, 52, 56, 60, 64
sLX, sLQ, sWb2, sPR = 68, 69, 70, 71
sLW, sXb, sWb, sXo, sWk, sWv, sKC, sW4, sLO, sHI, sKH = 72, 73, 74, 75, 76, 77, 78, 79, 80, 81, 82
sTAG, sXCC, sSLOW = 96, 97, 90
SPIN_MAX = 400000
WS = f"s[{rWS}:{rWS+3}]"

class Cfg:
    mapping = 0
    P = 3
    stamps = False
    prio = {0: [(None, 2), (9, 1), (1, 0)], 1: [(None, 3), (18, 2), (4, 1)]}
    force_fallback = False
    p1only = False
    convprio = 2
    kgenprio = 1
    kearly = 0
    xtspread = False
    clk = False
    xpre = 0
    barpos = 1
    deep = True
    b8pos = (15, 1)
    rpm7 = 2
    rpm = 2
    upre = -1
    lf = 8
    wb = 0
    ostsc = 'nt'
    f4sh = 2
    gx = 0
    ofsc = ''
    prewait = True
    gpre = 0
    onewait = True
    wo_sl = (7, 14, 23, 30, 39, 46, 55, 60)
    kx7 = True
    talate = False
    f2full = False
    f1full = False
    b8first = False
    sprio = 3
    ypre = False
    wv = 6
    xdma = False
    rest6 = 999
    fill0 = 0
    finfirst = False
    lead0 = 9
    ufirst = False
    lead = 9
    midbar = True
    gfill = 0
    q7 = False
    f1at = 4
    f1sh = 2
    uat = 7
    xorord = None
    kgenprio2 = None
    spread = True
    c0 = 144
    nkb = 10
    cwait = 6
    nub = 6
    startprio = 2
    xtd = 4
    restore = False
    lag = 0
    gate_first = True
    wo_at = 29
    prog = True
    b8late = False
    wsched = (4, 4, 0, 4, 4, 0, 0)
    fill = 12
    xtsc = 'sc1'
    pa = 24
    pollprio = 3
    wo_n = 4
    wopf = 1
    t0 = False
    gdrop = None
    f2s = 128
    d0 = 0
    zlate = False
    wo0 = 2
    tx = 0
    ola = 4
    osc = 'sc1'
    kvshift = (1, 2)
    nd = 2
    noconv = 0
    kvsc = 'sc1'
    hack = ''
    rot = 'hgq'
    opf = True
    psleep = 0
    no_mm = False
    noxt = False
    NT0 = 32
    n0 = 24
    n1 = 4
    cs = 1
    midconv = 31
    fast = True
    outsc = "nt"
    abounce = False
    obounce = True

STAMPS = []
NATURAL = True
def gen(cfg):
    A = Asm()
    STAMPS.clear()
    def srd(r, ptr, size):
        A(f"s_mov_b32 s{r}, s{ptr}"); A(f"s_and_b32 s{r+1}, s{ptr+1}, 0xffff")
        A(f"s_mov_b32 s{r+2}, {hex(size)}"); A(f"s_mov_b32 s{r+3}, 0x20000")
    def stamp(name, lvl=1):
        if name in ("start", "end"): lvl = 0.5
        if not cfg.stamps or lvl > cfg.stamps: return
        if cfg.clk == 2 and name in ("preB0", "par", "sig1", "f1slow", "slow", "convdone", "ost", "oflag", "Ba"): return
        if name not in STAMPS: STAMPS.append(name)
        i = STAMPS.index(name)
        A("s_memtime s[98:99]" if cfg.clk == 1 else "s_memrealtime s[98:99]")
        if cfg.clk == 2: A("s_memtime s[0:1]")
        A("s_waitcnt lgkmcnt(0)")
        A(f"v_writelane_b32 v3, s98, {i}")
        if cfg.clk == 2:
            assert i < 32
            A(f"v_writelane_b32 v3, s0, {32 + i}")
    def dump_stamps():
        if not cfg.stamps: return
        A("s_waitcnt vmcnt(0)")
        stamp("end")
        A(f"s_lshl_b32 s8, s{sID}, 3"); A(f"s_add_u32 s8, s8, s{sW}"); A("s_lshl_b32 s8, s8, 8"); A(f"s_add_u32 s8, s8, {WS_STAMP}")
        A("v_lshlrev_b32 v1, 2, v0")
        A(f"buffer_store_dword v3, v1, {WS}, s8 offen")
    def barrier(name=None):
        if name: stamp("pre" + name, 1 if name == "B0" else 2)
        A("s_barrier")
        if name: stamp(name, 1 if name in ("B0", "B7") else 1.2)
    def lds_signal(off, vtmp):
        A("s_mov_b64 exec, 1")
        A(f"v_mov_b32 v{vtmp}, {off}" if isinstance(off, str) else f"v_mov_b32 v{vtmp}, {L_FL + off}")
        A(f"v_mov_b32 v{vtmp+1}, 1")
        A(f"ds_add_u32 v{vtmp}, v{vtmp+1}")
        A("s_mov_b64 exec, -1")
    def lds_wait(off, count, vtmp):
        lp = A.newlabel("lw"); dn = A.newlabel("lwd")
        A(f"v_mov_b32 v{vtmp}, {off}" if isinstance(off, str) else f"v_mov_b32 v{vtmp}, {L_FL + off}")
        A(f"s_mov_b32 s8, {SPIN_MAX * 8}")
        A.label(lp)
        A(f"ds_read_b32 v{vtmp+1}, v{vtmp}")
        A("s_waitcnt lgkmcnt(0)")
        A(f"v_readfirstlane_b32 s9, v{vtmp+1}")
        A(f"s_cmp_ge_u32 s9, {count}")
        A(f"s_cbranch_scc1 {dn}")
        A("s_sleep 1")
        A("s_sub_u32 s8, s8, 1")
        A("s_cmp_lg_u32 s8, 0")
        A(f"s_cbranch_scc1 {lp}")
        A.label(dn)
    def poll(load, reg, sleep=2, first_issued=False, tries=SPIN_MAX):
        lp = A.newlabel("pl"); dn = A.newlabel("pld"); en = A.newlabel("ple")
        A(f"s_mov_b32 s8, {tries}")
        if first_issued: A(f"s_branch {en}")
        A.label(lp)
        A(load)
        A.label(en)
        A("s_waitcnt vmcnt(0)")
        A(f"v_cmp_ne_u32 vcc, s{sTAG}, v{reg}")
        A(f"s_cbranch_vccz {dn}")
        A("s_mov_b64 exec, vcc")
        if sleep: A(f"s_sleep {sleep}")
        A("s_sub_u32 s8, s8, 1")
        A("s_cmp_lg_u32 s8, 0")
        A(f"s_cbranch_scc1 {lp}")
        A.label(dn)
        A("s_mov_b64 exec, -1")
    def tag_load():
        A(f"s_add_u32 s94, s{pWs}, {WS_NONCE}"); A(f"s_addc_u32 s95, s{pWs+1}, 0")
        A(f"s_load_dword s{sTAG}, s[94:95], 0")
        A(f"s_getreg_b32 s{sXCC}, hwreg(HW_REG_XCC_ID, 0, 4)")
    def tag_finish():
        A("s_waitcnt lgkmcnt(0)")
        A(f"s_mul_i32 s{sTAG}, s{sTAG}, 0x9e3779b1"); A(f"s_add_u32 s{sTAG}, s{sTAG}, 0x7f4a7c15")
    HS = "" if cfg.hack else "sc1"
    def gflag(soff_sgpr, vtmp, sc="sc1"):
        A("s_mov_b64 exec, 1")
        A(f"v_mov_b32 v{vtmp}, s{sTAG}")
        A(f"buffer_store_dword v{vtmp}, off, {WS}, s{soff_sgpr} {sc}")
        A("s_mov_b64 exec, -1")
    def two_way(sreg, f0, f1):
        l1 = A.newlabel("el"); l2 = A.newlabel("fi")
        A(f"s_cmp_lg_u32 s{sreg}, 0"); A(f"s_cbranch_scc1 {l1}")
        hist = list(A.hist)
        f0()
        A(f"s_branch {l2}")
        A.label(l1); A.hist = hist
        f1()
        A.label(l2)

    FILL = []
    def fill(n):
        for _ in range(n):
            if FILL: A(FILL.pop(0))
    def queued(f):
        nonlocal A
        real = A; A = lambda t, tag=None: FILL.append(t); A.c = lambda t: None
        f(); A = real
    vX0, vX1, vW0, vW1, vWq = 4, 5, 6, 7, 136
    KS, VS = cfg.kvshift
    slot_of = lambda st: (st + 2) % 4
    def wq_lds(st): return slot_of(st) * SLOT + 24576
    DMA = []; XD = []
    def step_dmas(st, what="xqk"):
        slot = slot_of(st) * SLOT
        tag = ("st", st) if "x" in what else ("st", 8)
        ld = lambda v, rs, so, off: f"buffer_load_dwordx4 v{v}, s[{rs}:{rs+3}], s{so} offen offset:{off} lds"
        pre = [f"s_add_u32 s{sKC}, s{sROT}, {st}", f"s_and_b32 s{sKC}, s{sKC}, 7", f"s_mul_i32 s{sWk}, s{sKC}, 196608"]
        if "k" in what:
            DMA.append((tag, [f"s_add_u32 m0, s{sLW}, {slot + 16384}"] + pre + [f"s_add_u32 s{sWv}, s{sWk}, s{sWb2}"], ld(vW0, rW, sWv, 0)))
            DMA.append((tag, [], ld(vW1, rW, sWv, 1024)))
            pre = []
        if "q" in what and not ("x" in what and st >= 8 - cfg.nd):
            DMA.append((tag, [f"s_add_u32 m0, s{sLQ}, {wq_lds(st)}"] + pre + [f"s_add_u32 s{sWk}, s{sWk}, s{sWb}"], ld(vWq, rW, sWk, 0)))
        if "x" in what:
            own = cfg.gx and st >= 2
            D = XD if own else DMA
            kc = [f"s_add_u32 s{sKC}, s{sROT}, {st}", f"s_and_b32 s{sKC}, s{sKC}, 7"] if own else []
            D.append((tag, [f"s_add_u32 m0, s{sLX}, {slot}"] + kc + [f"s_lshl_b32 s{sXo}, s{sKC}, 7", f"s_add_u32 s{sXo}, s{sXo}, s{sXb}"], ld(vX0, rX, sXo, 0)))
            D.append((tag, [], ld(vX1, rX, sXo, 1024)))
            D.append((tag, [f"s_add_u32 s{sXo}, s{sXo}, {16384 - 2048}"], ld(vX0, rX, sXo, 2048)))
            D.append((tag, [], ld(vX1, rX, sXo, 3072)))
    for st in range(8): step_dmas(st)
    for st in range(8 - cfg.nd, 8): step_dmas(st, "q")
    dend = [max(i for i, d in enumerate(DMA) if d[0] == ("st", st)) + 1 for st in range(8)]
    dptr = [0]
    def dma_until(n, nf):
        while dptr[0] < min(n, len(DMA)):
            tag, pre, ins = DMA[dptr[0]]; dptr[0] += 1
            for p in pre: A(p)
            A(ins, tag)
            fill(nf)

    P = cfg.P
    sKV, sKV0, sWOo, sWOl, sVM, sF3 = 83, 84, 85, 86, 88, 91
    vIdx, vKo, vVo, vWO = 12, 13, 14, 15
    S = [16, 32]; O = [48, 64, 80, 96]; Q = [4, 8, 148, 152]
    STG = [112, 124, 136]
    Kr = lambda s: vr(STG[s], 4)
    Vr = lambda s, j: vr(STG[s] + 4 + 4 * j, 4)
    NT = 16
    def load_tile(i):
        s = i % P
        T = [lambda: A(f"buffer_load_dwordx4 {Kr(s)}, v{vKo}, {WS}, s{sKV} offen {cfg.kvsc}", ("k", i))]
        def vl():
            A(f"s_mov_b64 exec, s[{sVM}:{sVM+1}]")
            for j in range(2): A(f"buffer_load_dwordx4 {Vr(s,j)}, v{vVo}, {WS}, s{sKV} offen offset:{1024+512*j} {cfg.kvsc}", ("v", i))
            A("s_mov_b64 exec, -1")
            if i < NT - 1:
                A(f"s_add_u32 s{sKV}, s{sKV}, 4096")
                if i & 3 == 3: A(f"s_and_b32 s{sKV}, s{sKV}, 0x1ffff"); A(f"s_or_b32 s{sKV}, s{sKV}, s{sKV0}")
        T.append(vl)
        return T
    J2 = NT - 3; J1 = J2 - P
    wo_at = [(NT - 2, sl) for sl in cfg.wo_sl]
    vF3, vFX, vAT, vZA, SD, ZP, vZL = 232, 233, 234, 235, 236, 240, 2
    sQo, sZo, sATo, sF3o, sOo, sOf = 72, 73, 74, 75, 77, 78
    def attn_setup():
        L = []; B = L.append
        B(f"s_and_b32 s8, s{sTB}, 1"); B(f"s_lshl_b32 s9, s{sHG}, 1"); B("s_add_u32 s8, s8, s9"); B("s_lshl_b32 s8, s8, 1"); B(f"s_add_u32 s8, s8, s{sLO}")
        B(f"s_lshl_b32 s{sKV0}, s8, 17"); B(f"s_add_u32 s{sKV0}, s{sKV0}, {WS_KV}")
        B(f"s_lshl_b32 s{sQo}, s{sLO}, 12"); B(f"s_add_u32 s{sQo}, s{sQo}, {L_QF}")
        B(f"s_and_b32 s9, s{sTB}, 30"); B(f"s_add_u32 s9, s9, s{sKH}"); B("s_lshl_b32 s9, s9, 5"); B("s_add_u32 s8, s8, s9"); B("s_lshl_b32 s8, s8, 1"); B(f"s_add_u32 s8, s8, s{sHI}")
        B(f"s_lshl_b32 s{sOo}, s8, 10"); B(f"s_add_u32 s{sOo}, s{sOo}, {WS_OF}")
        B(f"s_lshl_b32 s{sOf}, s8, {cfg.f4sh}"); B(f"s_add_u32 s{sOf}, s{sOf}, {WS_F4}")
        B(f"s_lshr_b32 s8, s{sTB}, 2"); B("s_lshl_b32 s8, s8, 14"); B(f"s_lshl_b32 s9, s{sKH}, 16"); B("s_xor_b32 s8, s8, s9")
        B(f"s_lshl_b32 s9, s{sHI}, 11"); B("s_or_b32 s8, s8, s9"); B(f"s_or_b32 s{sKV}, s{sKV0}, s8")
        B(f"s_lshl_b32 s{sWOo}, s{sW}, 13"); B(f"s_lshl_b32 s8, s{sHG}, 7"); B(f"s_add_u32 s{sWOo}, s{sWOo}, s8")
        B(f"s_lshl_b32 s{sWOl}, s{sW}, 10")
        B(f"s_mov_b32 s{sVM}, 0xffff"); B(f"s_mov_b32 s{sVM+1}, 0xffff")
        B(f"v_lshlrev_b32 v{vKo}, 4, v0")
        B("v_and_b32 v1, 15, v0"); B("v_lshrrev_b32 v255, 5, v0"); B("v_lshl_add_u32 v1, v255, 4, v1"); B(f"v_lshlrev_b32 v{vVo}, 4, v1")
        B(f"v_mov_b32 v{vIdx}, 0xdddddddd")
        B("v_and_b32 v1, 27, v0"); B("v_cmp_eq_u32 vcc, 16, v1"); B("v_mov_b32 v1, 0x3f803f80"); B("v_cndmask_b32 v1, 0, v1, vcc")
        for s_ in range(P):
            for r in range(4, 12): B(f"v_mov_b32 v{STG[s_]+r}, v1")
        B("v_bfe_u32 v1, v0, 4, 1"); B("v_lshlrev_b32 v1, 2, v1")
        B("v_and_b32 v255, 7, v0"); B(f"v_lshlrev_b32 v{vFX}, 3, v255"); B("v_xor_b32 v1, v1, v255"); B("v_lshlrev_b32 v1, 4, v1")
        B("v_lshrrev_b32 v255, 3, v0")
        B(f"v_lshl_add_u32 v{vAT}, v255, 12, v1"); B(f"v_lshl_add_u32 v{vWO}, v255, 10, v1")
        B("v_and_b32 v255, 1, v255"); B(f"v_lshl_add_u32 v{vFX}, v255, 8, v{vFX}")
        B(f"v_lshlrev_b32 v{vF3}, 3, v0"); B(f"v_lshlrev_b32 v{vZA}, 2, v0")
        B(f"s_lshl_b32 s8, s{sTB}, 1"); B(f"s_add_u32 s8, s8, s{sLO}")
        B(f"s_lshl_b32 s{sZo}, s8, 10"); B(f"s_add_u32 s{sZo}, s{sZo}, {WS_Z}")
        B("s_and_b32 s8, s8, 61"); B("s_lshl_b32 s8, s8, 7"); B(f"s_add_u32 s8, s8, {WS_FX}"); B(f"v_add_u32 v{vFX}, s8, v{vFX}")
        B(f"s_lshl_b32 s{sATo}, s{sHG}, 18"); B(f"s_lshl_b32 s8, s{sW}, 15"); B(f"s_add_u32 s{sATo}, s{sATo}, s8"); B(f"s_lshl_b32 s8, s{sTB}, 7"); B(f"s_add_u32 s{sATo}, s{sATo}, s8")
        B(f"s_add_u32 s{sATo}, s{sATo}, {WS_AT}")
        B(f"s_lshl_b32 s{sF3o}, s{sHG}, 9"); B(f"s_add_u32 s{sF3o}, s{sF3o}, {WS_F3}")
        isv = lambda t: t.startswith("v_") and " s" not in t.replace(", s", " s").split(None, 1)[1].join(["  ", ""])
        return [t for t in L if isv(t)], [t for t in L if not isv(t)]
    def zero_o(z):
        for u in range(4): A(f"v_mfma_f32_32x32x16_bf16 {vr(O[u],16)}, {vr(z,4)}, {vr(z,4)}, 0")
    def f2_addr(v, near):
        L = [f"s_xor_b32 s8, s{sHG}, {KS}", "v_and_b32 v1, 1, v0", f"v_mul_u32_u24 v1, {KS ^ VS}, v1", "v_xor_b32 v1, s8, v1"]
        if near: L += [f"s_and_b32 s8, s{sTB}, 28", f"v_and_b32 v{v}, 3, v0", f"v_or_b32 v{v}, s8, v{v}"]
        else: L += [f"v_and_b32 v{v}, 31, v0"]
        return L + [f"v_lshl_add_u32 v{v}, v1, 5, v{v}", f"v_mul_u32_u24 v{v}, {cfg.f2s}, v{v}", f"v_add_u32 v{v}, {WS_F2}, v{v}"]
    def attn_start(flags):
        for fl in flags: lds_wait(fl, 1, 244)
        stamp("kvrdy")
        A.vm = []
        for i in range(P):
            for t in load_tile(i): t()
        A(f"s_lshr_b32 s9, s{sW}, 1")
        for j in range(4):
            A(f"s_add_u32 s8, s9, {j + 1}"); A("s_and_b32 s8, s8, 3"); A("s_lshl_b32 s8, s8, 10"); A(f"s_add_u32 s8, s8, s{sQo}")
            A(f"v_add_u32 v255, s8, v{vKo}")
            A(f"ds_read_b128 {vr(Q[j],4)}, v255", "qf")
        A(f"v_lshrrev_b32 v{vZL}, 5, v0"); A(f"v_mul_u32_u24 v{vZL}, 384, v{vZL}"); A(f"v_add_u32 v{vZL}, v{vZL}, v{vZA}")
    side_ld = [f"buffer_load_dwordx2 {vr(SD,2)}, v{vF3}, {WS}, s{sF3o} offen sc1", f"buffer_load_dwordx2 {vr(SD+2,2)}, v{vFX}, {WS}, 0 offen sc1"]
    def side_cmp():
        A(f"v_cmp_ne_u32 vcc, s{sTAG}, v{SD}"); A(f"v_cmp_ne_u32 s[92:93], s{sTAG}, v{SD+1}"); A(f"v_cmp_ne_u32 s[10:11], s{sTAG}, v{SD+2}")
        A("s_or_b64 vcc, vcc, s[92:93]"); A("s_or_b64 vcc, vcc, s[10:11]")
    def qk(u, i):
        A.wait(vm=[("k", i)])
        A(f"v_mfma_f32_32x32x16_bf16 {vr(S[u & 1],16)}, {Kr(i % P)}, {vr(Q[u],4)}, 0")
    def sm(u, i, j):
        A.wait(vm=[("v", i)])
        A(f"v_smfmac_f32_32x32x32_bf16 {vr(O[u],16)}, {Vr(i % P, j)}, {vr(S[u & 1]+8*j,8)}, v{vIdx}")
    def ex(u, a, b):
        for r in range(a, b): A(f"v_exp_f32 v{S[u & 1]+r}, v{S[u & 1]+r}")
    def tile(i, extra=None):
        X = {k: [] for k in range(65)}
        for u in range(4):
            if u: X[16*u + 2].append(lambda u=u: sm(u - 1, i, 1))
            elif i: X[2].append(lambda: sm(3, i - 1, 1))
            if u < 3: X[16*u + 5].append(lambda u=u: qk(u + 1, i))
            elif i + 1 < NT:
                if cfg.onewait: X[53].append(lambda: A.wait(vm=[("v", i + 1)]))
                X[53].append(lambda: qk(0, i + 1))
            X[16*u + 10].append(lambda u=u: sm(u, i, 0))
        if i >= 1 and i - 1 + P < NT:
            nl = load_tile(i - 1 + P); X[3].append(nl[0]); X[4].append(nl[1])
        for k, v in (extra or {}).items(): X[k] += v
        for k in range(64):
            for f in X[k]: f()
            ex(k >> 4, k & 15, (k & 15) + 1)
        for f in X[64]: f()

    A.label(NAME)
    if cfg.stamps and cfg.t0: A("s_memrealtime s[92:93]")
    A("s_cmp_ge_u32 s2, 256")
    A("s_cbranch_scc1 L_end")
    A("s_load_dwordx16 s[16:31], s[0:1], 0")
    A("s_load_dwordx16 s[32:47], s[0:1], 64")
    if cfg.t0 == 2:
        A("s_waitcnt lgkmcnt(0)"); A("s_memrealtime s[88:89]")
    A.c("pull this kernel's code into L2: one line per wave")
    A("s_getpc_b64 s[12:13]")
    A.label("L_pc")
    A("v_lshrrev_b32 v1, 6, v0")
    A("s_and_b32 s9, s2, 0xf8")
    A("v_and_b32 v2, 32, v0"); A("v_lshl_add_u32 v2, v2, 3, v1")
    A("v_add_lshl_u32 v2, v2, s9, 7")
    A("v_min_u32 v2, L_end-L_pc, v2")
    A("global_load_dword v2, v2, s[12:13]", "pf")
    A(f"v_readfirstlane_b32 s{sW}, v1")
    A("v_and_b32 v0, 63, v0")
    if cfg.stamps: A("v_mov_b32 v3, 0")
    xh = cfg.mapping; hb = 3 - xh
    A("s_and_b32 s8, s2, 7"); A("s_lshr_b32 s9, s2, 3")
    A(f"s_and_b32 s10, s8, {(1 << xh) - 1}"); A(f"s_lshl_b32 s10, s10, {hb}")
    A(f"s_and_b32 s11, s9, {(1 << hb) - 1}"); A(f"s_or_b32 s{sHG}, s10, s11")
    A(f"s_lshr_b32 s10, s8, {xh}"); A(f"s_lshl_b32 s10, s10, {5 - hb}")
    A(f"s_lshr_b32 s11, s9, {hb}"); A(f"s_or_b32 s{sTB}, s10, s11")
    A(f"s_lshl_b32 s{sID}, s{sHG}, 5"); A(f"s_or_b32 s{sID}, s{sID}, s{sTB}")
    A(f"s_and_b32 s{sW4}, s{sW}, 3"); A(f"s_lshr_b32 s{sKH}, s{sW}, 2")
    A("s_cbranch_scc0 L_common")
    A.c("SSM waves: parameter loads go out first")
    pAr, pAi, pBr, pBi, pCr, pCi, pL, pD = 20, 21, 22, 23, 24, 25, 26, 27
    A("s_setprio 3")
    A(f"s_lshl_b32 s8, s{sID}, 2"); A(f"s_add_u32 s8, s8, s{sW4}")
    A("s_lshl_b32 s9, s8, 7"); A("s_and_b32 s8, s8, -2")
    A("v_lshl_add_u32 v1, v0, 1, s9")
    A("v_mov_b32 v12, s8")
    A("s_waitcnt lgkmcnt(0)")
    A(f"global_load_ushort v{pL}, v12, s[{pLdt}:{pLdt+1}]", "par")
    for r, p in ((pAr, pAre), (pAi, pAim)): A(f"global_load_ushort v{r}, v1, s[{p}:{p+1}]", "par")
    A("s_barrier")
    for r, p in ((pBr, pBre), (pBi, pBim), (pCr, pCre), (pCi, pCim)): A(f"global_load_ushort v{r}, v1, s[{p}:{p+1}]", "par2")
    A(f"global_load_ushort v{pD}, v12, s[{pDsk}:{pDsk+1}]", "par3")
    ssm_vm = list(A.vm)
    A.label("L_common")
    A.c("DMA source offsets")
    A(f"s_add_u32 s{sROT}, s{sHG}, s{sTB}")
    if cfg.rot == "hgq": A(f"s_lshr_b32 s{sROT}, s{sTB}, 2"); A(f"s_add_u32 s{sROT}, s{sROT}, s{sHG}")
    if isinstance(cfg.rot, tuple):
        m1, a_, m2, b_ = cfg.rot
        A(f"s_lshr_b32 s{sROT}, s{sTB}, 2"); A(f"s_and_b32 s{sROT}, s{sROT}, {m2}"); A(f"s_lshl_b32 s{sROT}, s{sROT}, {b_}")
        A(f"s_and_b32 s8, s{sHG}, {m1}"); A(f"s_lshl_b32 s8, s8, {a_}"); A(f"s_add_u32 s{sROT}, s{sROT}, s8")
    if cfg.rot == "none": A(f"s_mov_b32 s{sROT}, 0")
    if cfg.rot == "xcd": A(f"s_mov_b32 s{sROT}, s2")
    if cfg.rot == "hg": A(f"s_mov_b32 s{sROT}, s{sHG}")
    if cfg.rot == "hgx": A(f"s_add_u32 s{sROT}, s{sHG}, s2")
    if cfg.rot == "half": A(f"s_lshl_b32 s{sROT}, s{sROT}, 2"); A(f"s_add_u32 s{sROT}, s{sROT}, s2")
    if cfg.rot == "adj2": A(f"s_and_b32 s{sROT}, s{sROT}, 1"); A(f"s_add_u32 s{sROT}, s{sROT}, s2")
    if cfg.rot == "hg2tb": A(f"s_add_u32 s{sROT}, s{sROT}, s{sTB}")
    if cfg.rot == "hg4tb": A(f"s_lshl_b32 s{sROT}, s{sTB}, 2"); A(f"s_add_u32 s{sROT}, s{sROT}, s{sHG}")
    if cfg.rot == "hg4tbx": A(f"s_lshl_b32 s{sROT}, s{sTB}, 2"); A(f"s_add_u32 s{sROT}, s{sROT}, s{sHG}"); A(f"s_add_u32 s{sROT}, s{sROT}, s2")
    if cfg.rot == "hgtb1x": A(f"s_and_b32 s{sROT}, s{sTB}, 1"); A(f"s_add_u32 s{sROT}, s{sROT}, s{sHG}"); A(f"s_add_u32 s{sROT}, s{sROT}, s2")
    A(f"s_and_b32 s{sROT}, s{sROT}, 7")
    if cfg.xorord: A(f"s_and_b32 s8, s{sTB}, {cfg.xorord[0]}"); A(f"s_xor_b32 s{sROT}, s{sROT}, s8")
    A("v_lshrrev_b32 v1, 3, v0")
    A("v_lshrrev_b32 v14, 4, v0")
    A("v_and_b32 v12, 7, v0")
    A("v_xor_b32 v13, v12, v14")
    A("v_lshlrev_b32 v13, 4, v13")
    A(f"v_lshl_add_u32 v{vX0}, v1, 10, v13")
    A(f"v_xor_b32 v{vX1}, 64, v{vX0}")
    A(f"v_add_u32 v{vX1}, {8192 - 1024}, v{vX1}")
    A("v_and_b32 v14, 1, v14"); A("v_lshlrev_b32 v14, 1, v14"); A("v_xor_b32 v13, v12, v14"); A("v_lshlrev_b32 v13, 4, v13")
    A(f"v_mul_u32_u24 v{vW0}, 3072, v1"); A(f"v_add_u32 v{vW0}, v{vW0}, v13")
    A(f"v_xor_b32 v{vW1}, 64, v{vW0}"); A(f"v_add_u32 v{vW1}, {8 * 3072 - 1024}, v{vW1}")
    A(f"s_and_b32 s{sLO}, s{sW}, 1"); A(f"s_lshr_b32 s{sHI}, s{sW4}, 1")
    A("v_lshrrev_b32 v1, 2, v0"); A("v_mul_u32_u24 v1, 3072, v1"); A("v_and_b32 v12, 3, v0"); A("v_lshl_add_u32 v1, v12, 4, v1")
    A("v_and_b32 v12, 32, v0"); A(f"v_xor_b32 v{vWq}, v1, v12")
    A(f"s_lshl_b32 s{sLW}, s{sW4}, 11"); A(f"s_lshl_b32 s{sLX}, s{sW4}, 12"); A(f"s_lshl_b32 s{sLQ}, s{sW4}, 10")
    A(f"s_lshr_b32 s{sXb}, s{sTB}, 1"); A(f"s_lshl_b32 s{sXb}, s{sXb}, 2"); A(f"s_add_u32 s{sXb}, s{sXb}, s{sW4}"); A(f"s_lshl_b32 s{sXb}, s{sXb}, 15")
    A(f"s_mul_i32 s{sWb}, s{sW4}, 49152"); A(f"s_lshl_b32 s8, s{sHG}, 7"); A(f"s_add_u32 s{sWb}, s{sWb}, s8")
    A(f"s_and_b32 s{sPR}, s{sTB}, 1")
    A(f"s_mul_i32 s8, s{sPR}, {1024 + 128*(VS - KS)}"); A(f"s_add_u32 s8, s8, {1024 + 128*KS}"); A(f"s_xor_b32 s{sWb2}, s{sWb}, s8")
    A(f"s_lshl_b32 s8, s{sPR}, 6"); A(f"s_add_u32 s{sWb}, s{sWb}, s8")
    A("s_waitcnt lgkmcnt(0)")
    if cfg.stamps and cfg.t0:
        STAMPS.append("t0"); A("v_writelane_b32 v3, s92, 0")
        if cfg.t0 == 2: STAMPS.append("karg"); A("v_writelane_b32 v3, s88, 1")
    stamp("start")
    srd(rX, pX, 0x200000); srd(rW, pWqkv, 0x180000)
    A(f"s_cmp_lg_u32 s{sKH}, 0")
    A("s_cbranch_scc1 L_ssm")
    A("s_barrier")
    A.vm = ["pf"]

    sTT, sHP = sLO, sHI
    vAX, vAW, vAQ = 24, 8, 16
    vSt, vGA, vGacc, vG = 18, 20, 248, 15
    aQ, aK, aV, FR, TMP, X0 = 32, 128, 144, 160, 160, 224
    if cfg.t0: stamp("dma0")
    dma_until(dend[0], 0)
    if cfg.t0: stamp("dma1")
    GF = 240
    A.c("gate_w fragments of this workgroup's first chunk")
    A("v_lshrrev_b32 v22, 4, v0"); A(f"s_lshl_b32 s8, s{sROT}, 7"); A("v_lshl_add_u32 v1, v22, 4, s8")
    for ks in range(2): A(f"global_load_dwordx4 {vr(GF+4*ks,4)}, v1, s[{pGate}:{pGate+1}] offset:{64*ks}", "gw")
    tag_load()
    def gsetup():
        srd(rWS, pWs, WS_SIZE); srd(rWO, pWo, 0x80000); srd(rOUT, pOut, 0x200000)
        A.c("fragment read addresses (v22 = lane >> 4)")
        A("v_and_b32 v1, 15, v0")
        A("v_bfe_u32 v14, v0, 1, 3"); A("v_xor_b32 v14, v14, v22"); A("v_lshlrev_b32 v14, 4, v14")
        A("v_lshl_add_u32 v14, v1, 7, v14")
        A(f"v_add_u32 v{vAX}, s{sLX}, v14"); A(f"v_xor_b32 v{vAX+1}, 64, v{vAX}")
        for ks in range(2): A(f"v_xor_b32 v{vAX+2+ks}, 0x1000, v{vAX+ks}")
        for k in range(4): A(f"v_add_u32 v{vAX+4+k}, {2*SLOT}, v{vAX+k}")
        A("v_bfe_u32 v14, v0, 2, 2"); A("v_lshl_add_u32 v14, v22, 3, v14")
        A("v_and_b32 v21, 3, v0"); A("v_lshlrev_b32 v21, 3, v21"); A("v_and_b32 v19, 16, v0")
        A(f"v_lshl_add_u32 v{vAQ}, v14, 6, v21"); A(f"v_lshl_add_u32 v{vAQ}, v19, 1, v{vAQ}")
        A(f"s_lshl_b32 s8, s{sLO}, 5"); A(f"v_xor_b32 v{vAQ}, s8, v{vAQ}"); A(f"v_add_u32 v{vAQ+1}, {2*SLOT}, v{vAQ}")
        A("v_lshl_add_u32 v14, v14, 7, v21"); A("v_and_b32 v19, 24, v0"); A(f"v_lshl_add_u32 v{vAW}, v19, 2, v14")
        A(f"s_lshl_b32 s8, s{sLO}, 6"); A(f"v_xor_b32 v{vAW}, s8, v{vAW}"); A(f"v_xor_b32 v{vAW+1}, 32, v{vAW}")
        for ct in range(2): A(f"v_add_u32 v{vAW+2+ct}, {2*SLOT}, v{vAW+ct}")
        A.c("store offsets: K lane-linear; V (half tile, key half, dim)")
        A(f"v_lshlrev_b32 v{vSt}, 4, v0")
        A("v_and_b32 v14, 16, v0"); A("v_lshrrev_b32 v19, 1, v0"); A("v_and_b32 v19, 16, v19"); A("v_sub_u32 v14, v14, v19"); A("v_lshlrev_b32 v14, 4, v14")
        A(f"v_mul_lo_u32 v14, v14, s{sPR}"); A(f"v_add_u32 v{vSt}, v{vSt}, v14")
        A("v_and_b32 v1, 31, v0"); A(f"v_lshlrev_b32 v{vGA}, 2, v1")
        A(f"v_mov_b32 v{vGacc}, 0"); A(f"v_mov_b32 v{vGacc+1}, 0")
        A(f"s_mul_i32 s8, s{sPR}, {KS ^ VS}"); A(f"s_xor_b32 s8, s8, {KS}"); A(f"s_xor_b32 s8, s8, s{sHG}"); A("s_lshl_b32 s8, s8, 19")
        A(f"s_lshr_b32 s9, s{sXb}, 4"); A("s_add_u32 s8, s8, s9"); A(f"s_lshl_b32 s9, s{sPR}, 10"); A("s_add_u32 s8, s8, s9"); A(f"s_lshl_b32 s9, s{sLO}, 18"); A("s_add_u32 s8, s8, s9")
        A(f"s_add_u32 s83, s8, {WS_KV}"); A("s_xor_b32 s84, s83, 2048"); A("s_add_u32 s85, s83, 0x20000"); A("s_add_u32 s86, s84, 0x20000")
        A(f"s_lshl_b32 s9, s{sTB}, 1"); A(f"s_add_u32 s9, s9, s{sTT}")
        A(f"s_mul_i32 s12, s{sID}, {cfg.f2s}"); A(f"s_add_u32 s12, s12, {WS_F2}")
        A(f"s_lshl_b32 s13, s9, 10"); A(f"s_lshl_b32 s14, s{sHG}, 7"); A("s_add_u32 s13, s13, s14"); A(f"s_add_u32 s13, s13, {WS_Z}")
        A(f"s_lshl_b32 s14, s9, 7"); A(f"s_lshl_b32 s15, s{sHG}, 3"); A("s_add_u32 s14, s14, s15"); A(f"s_add_u32 s14, s14, {WS_FX}")
        A(f"s_lshl_b32 s8, s{sLO}, 12"); A(f"s_add_u32 s8, s8, s{sLQ}"); A("s_xor_b32 s9, s8, 1024"); A(f"s_add_u32 s8, s8, {L_QF}"); A(f"s_add_u32 s9, s9, {L_QF}")
        A("v_lshl_add_u32 v22, v0, 4, s8"); A("v_lshl_add_u32 v23, v0, 4, s9")
        A(f"s_xor_b32 s101, s{sPR}, s{sHP}")
        A(f"s_mov_b32 s15, {f32(0.25 * math.log2(math.e))}")
    queued(gsetup)
    fill(len(FILL) - 7 * cfg.gfill)
    dma_until(dend[1], cfg.gfill)
    if cfg.lf:
        A(f"s_lshr_b32 s8, s{sTB}, 2"); A("s_lshl_b32 s8, s8, 7"); A(f"s_add_u32 s8, s8, {WS_LF}")
        A(f"buffer_load_dword v2, off, {WS}, s8 sc1", ("st", 3))
    stamp("dmaiss", 2)
    assert (cfg.nd == 2 or not cfg.deep) and cfg.nd >= 1 and not cfg.b8late and not cfg.gx
    GD = 16 - 2 * cfg.nd
    XL = 48
    xreg = lambda g, t: X0 + 8 * g + 4 * t if (g < 2 and t < 2) else (XL + 16 * (g - GD) if g >= GD else FR + 32 * (g & 1)) + 4 * t
    wreg = lambda g, c: 112 + 4 * (g - GD) if (c == 2 and g >= GD) else (FR + 32 if (g == 15 and cfg.deep) else FR + 32 * (g & 1) + 16) + 4 * c
    def wread(g, c):
        st, ks = g >> 1, g & 1
        o = wq_lds(st) if c == 2 else slot_of(st) * SLOT + 16384
        hi = int(o >= 2 * SLOT); o -= 2 * SLOT * hi
        v, rs = (vAQ + hi, 64) if c == 2 else (vAW + c + 2 * hi, 128)
        return [lambda i=i: A(f"ds_read_b64_tr_b16 {vr(wreg(g, c) + 2*i, 2)}, v{v} offset:{o + (32*ks + 4*i) * rs}", ("w", g, c)) for i in range(2)]
    def reads(g):
        st, ks = g >> 1, g & 1
        o = slot_of(st) * SLOT
        hi = int(o >= 2 * SLOT); o -= 2 * SLOT * hi
        xr_ = [lambda t=t: A(f"ds_read_b128 {vr(xreg(g, t), 4)}, v{vAX + ks + 2*(t >> 1) + 4*hi} offset:{o + 2048*(t & 1)}", ("x", g, t)) for t in range(4)]
        T = [xr_[0]] + wread(g, 0) + xr_[1:]
        for c in range(1, 3 if g < GD else 2): T += wread(g, c)
        return T
    tag_finish()
    A("s_setprio 2")
    late_q = []
    vm0 = list(A.vm)
    issued = set()
    def mm(g, c, t, isv):
        A.wait(lg=[("x", g, t), ("w", g, c)])
        acc = vr((aK + 16*c if c < 2 else aQ) + 4*t, 4)
        w_, x_ = vr(wreg(g, c), 4), vr(xreg(g, t), 4)
        A(f"v_mfma_f32_16x16x32_bf16 {acc}, {x_ + ', ' + w_ if (isv and c < 2) else w_ + ', ' + x_}, {'0' if g == 0 else acc}")
    def mainloop(isv):
        A.vm = list(vm0); A.lg = []
        A.wait(vm=[("st", 0)])
        barrier("B0")
        for f in reads(0): f()
        late_q.clear(); pend = []
        for g in range(16):
            st, ks = g >> 1, g & 1
            if ks == 0 and not (g == 14 and cfg.deep): pend += reads(g + 1)
            prods_ = [(c, t) for c in range(3 if g < GD else 2) for t in range(4)]
            for k, (c, t) in enumerate(prods_):
                if (g, k) == cfg.b8pos if st == 7 else (ks == 1 and k == cfg.barpos):
                    while pend: pend.pop(0)()
                    A.wait(vm=[("st", st + 1)], lg=list(A.lg))
                    barrier(f"B{st+1}")
                    if st < 7: pend += reads(g + 1) + (reads(15) if (st == 6 and cfg.deep) else [])
                    else:
                        for gg in range(GD, 16): pend += wread(gg, 2)
                mm(g, c, t, isv)
                left = len(prods_) - k
                for _ in range(cfg.rpm7 if (g >= 13 and cfg.deep) else max(-(-len(pend) // left), min(cfg.rpm, len(pend))) if g < 15 else 2):
                    if pend: pend.pop(0)()
            if g >= GD: late_q.extend((lambda g=g, t=t: mm(g, 2, t, False)) for t in range(4))
        for f in pend: f()
    two_way(sPR, lambda: mainloop(False), lambda: mainloop(True))
    A.c("K/V epilogue; the last Q products run under it")
    for m in range(4):
        late_q.pop(0)()
        for i in range(4): A(f"v_cvt_pk_bf16_f32 v{TMP+4*m+i}, v{aK+8*m+2*i}, v{aK+8*m+2*i+1}")
        late_q.pop(0)()
        for k in range(2): A(f"v_permlane16_swap_b32 v{TMP+4*m+k}, v{TMP+4*m+2+k}")
        A(f"buffer_store_dwordx4 {vr(TMP+4*m,4)}, v{vSt}, {WS}, s{83+m} offen sc1")
    stamp("kvst")
    if cfg.gdrop is not None: A(f"s_setprio {cfg.gdrop}")
    for f in late_q: f()
    A.c("Q fragments")
    for e in range(2):
        for r in range(8): A(f"v_mul_f32 v{aQ+8*e+r}, s15, v{aQ+8*e+r}")
        for i in range(4): A(f"v_cvt_pk_bf16_f32 v{aQ+8*e+i}, v{aQ+8*e+2*i}, v{aQ+8*e+2*i+1}")
        for k in range(2): A(f"v_permlane16_swap_b32 v{aQ+8*e+k}, v{aQ+8*e+2+k}")
        A(f"ds_write_b128 v{22+e}, {vr(aQ+8*e,4)}")
    def gate():
        A.c("partial gate logit over the first chunk (the eight workgroups of a token block cover all chunks)")
        for ks in range(2):
            for r in range(4):
                for t in range(2): A(f"v_dot2c_f32_bf16 v{vGacc+t}, v{X0+8*ks+4*t+r}, v{GF+4*ks+r}")
    if cfg.gate_first: gate()
    stamp("qdone")
    gset = f2_addr(17, True) + sum(attn_setup(), [])
    for r in range(4): A(f"v_mov_b32 v{24+r}, 0")
    zero_o(24)
    npre = 10 + 6 + 4 + 8 * P + cfg.gpre if cfg.gpre >= 0 else 0
    for t in gset[:npre]: A(t)
    gset = gset[npre:]
    if cfg.lf:
        A(f"s_lshr_b32 s9, s{sTB}, 2"); A("s_lshl_b32 s9, s9, 7"); A(f"s_add_u32 s9, s9, {WS_LF}")
        A(f"s_xor_b32 s8, s{sHG}, {KS}"); A("v_and_b32 v1, 1, v0"); A(f"v_mul_u32_u24 v1, {KS ^ VS}, v1"); A("v_xor_b32 v1, s8, v1")
        A("v_and_b32 v19, 3, v0"); A("v_lshl_add_u32 v19, v1, 2, v19"); A("v_lshl_add_u32 v19, v19, 2, s9")
        A(f"s_and_b32 s8, s{sTB}, 3"); A(f"s_lshl_b32 s10, s{sHG}, 2"); A("s_add_u32 s8, s8, s10"); A("s_lshl_b32 s8, s8, 2"); A("s_add_u32 s10, s8, s9")
    A.c("the last wave to drain its K/V stores raises the workgroup's word and waits for the first producers")
    A(f"v_mov_b32 v1, {L_FL + FL_KD}"); A("v_mov_b32 v2, 1")
    A("s_mov_b64 exec, 1")
    A("s_waitcnt vmcnt(0)")
    A("ds_add_rtn_u32 v2, v1, v2")
    A("s_mov_b64 exec, -1")
    if not cfg.gate_first: gate()
    A("s_waitcnt lgkmcnt(0)")
    A("v_readfirstlane_b32 s11, v2")
    lb = A.newlabel("nolast")
    A("s_cmp_lg_u32 s11, 3"); A(f"s_cbranch_scc1 {lb}")
    if cfg.lf: gflag(10, 1, "")
    gflag(12, 1)
    A.label(lb)
    stamp("kvflag")
    if cfg.p1only:
        dump_stamps(); A("s_endpgm")
    lb = A.newlabel("noz")
    A("s_cmp_lg_u32 s101, 0"); A(f"s_cbranch_scc1 {lb}")
    A(f"v_permlane16_swap_b32 v{vGacc}, v{vGacc+1}"); A(f"v_add_f32 v{vGacc}, v{vGacc}, v{vGacc+1}")
    A(f"v_mov_b32 v2, v{vGacc}"); A(f"v_permlane32_swap_b32 v2, v{vGacc}"); A(f"v_add_f32 v2, v2, v{vGacc}")
    A(f"buffer_store_dword v2, v{vGA}, {WS}, s13 offen sc1")
    A.label(lb)
    for t in gset: A(t)
    TA = 220
    def tail_addr():
        A.c("addresses of the output projection, parked until the tail")
        A("v_lshrrev_b32 v156, 5, v0"); A("v_bfe_u32 v1, v0, 2, 2"); A("v_lshl_add_u32 v157, v156, 2, v1"); A("v_lshlrev_b32 v157, 7, v157")
        A("v_lshl_add_u32 v158, v156, 4, v1"); A("v_lshlrev_b32 v158, 7, v158")
        A("v_and_b32 v159, 30, v0"); A("v_lshlrev_b32 v159, 10, v159"); A("v_lshl_add_u32 v159, v156, 5, v159")
        A("v_and_b32 v1, 1, v0"); A("v_lshl_add_u32 v157, v1, 5, v157"); A("v_lshl_add_u32 v158, v1, 3, v158"); A(f"v_lshl_add_u32 v{TA+5}, v1, 4, v159")
        A("v_bfe_u32 v1, v0, 4, 1"); A("v_lshl_add_u32 v157, v1, 4, v157"); A("v_lshl_add_u32 v158, v1, 5, v158")
        A("v_bfe_u32 v1, v0, 1, 1"); A("v_lshl_add_u32 v157, v1, 3, v157"); A("v_lshl_add_u32 v158, v1, 4, v158")
        A("v_bfe_u32 v1, v0, 3, 1"); A(f"v_xor_b32 v156, s{sHP}, v1"); A("v_lshl_add_u32 v157, v156, 6, v157")
        A(f"v_xor_b32 v1, s{sTT}, v1"); A("v_lshl_add_u32 v158, v1, 6, v158")
        A(f"s_lshl_b32 s8, s{sHP}, 15"); A(f"v_add_u32 v{TA+1}, s8, v157"); A(f"v_xor_b32 v{TA}, 64, v{TA+1}")
        A(f"s_lshl_b32 s8, s{sHP}, 12"); A(f"s_add_u32 s8, s8, {L_EX}"); A(f"v_add_u32 v{TA+2}, s8, v158")
        A(f"s_lshl_b32 s8, s{sW}, 12"); A(f"s_add_u32 s9, s8, {L_CONVX}"); A("s_xor_b32 s8, s8, 8192"); A(f"s_add_u32 s8, s8, {L_CONVX}")
        A(f"v_add_u32 v{TA+3}, s9, v{vKo}"); A(f"v_add_u32 v{TA+4}, s8, v{vKo}")
        A("v_and_b32 v1, 15, v0"); A(f"v_lshlrev_b32 v{TA+6}, {cfg.f4sh + 1}, v1")
        A(f"s_lshl_b32 s8, s{sTB}, 8"); A(f"s_lshl_b32 s9, s{sHP}, 7"); A("s_add_u32 s8, s8, s9"); A(f"s_lshl_b32 s9, s{sTT}, 2"); A("s_add_u32 s8, s8, s9")
        A("s_lshl_b32 s87, s8, 8"); A(f"s_add_u32 s87, s87, {WS_OF}"); A(f"s_lshl_b32 s76, s8, {cfg.f4sh - 2}"); A(f"s_add_u32 s76, s76, {WS_F4}")
        A(f"s_lshl_b32 s100, s{sTB}, 16"); A(f"s_lshl_b32 s8, s{sTT}, 15"); A("s_add_u32 s100, s100, s8"); A(f"s_lshl_b32 s8, s{sHG}, 7"); A("s_add_u32 s100, s100, s8")
        A(f"s_lshl_b32 s8, s{sHP}, 6"); A("s_add_u32 s100, s100, s8")
    if not cfg.talate: tail_addr()
    lb = A.newlabel("nopoll")
    A("s_cmp_lg_u32 s11, 3"); A(f"s_cbranch_scc1 {lb}")
    lb2 = A.newlabel("near")
    if cfg.lf:
        poll(f"buffer_load_dword v18, v19, {WS}, 0 offen sc1", 18, sleep=0, tries=cfg.lf)
        A(f"s_cbranch_vccz {lb2}")
    elif cfg.prewait: A("s_waitcnt vmcnt(0)")
    if cfg.d0: A(f"s_sleep {cfg.d0}")
    poll(f"buffer_load_dword v18, v17, {WS}, 0 offen sc1", 18, sleep=cfg.psleep)
    A.label(lb2)
    lds_signal(FL_KR, 1)
    A.label(lb)
    A("s_waitcnt vmcnt(0)")
    attn_start([FL_KR])
    if cfg.talate: tail_addr()
    g_state = (list(A.vm), list(A.lg))
    A("s_cmp_lg_u32 s101, 0"); A("s_cbranch_scc1 L_attn")
    A("s_mov_b64 exec, 1")
    A(f"v_mov_b32 v22, s{sTAG}"); A(f"v_mov_b32 v23, s{sXCC}")
    A(f"buffer_store_dwordx2 v[22:23], off, {WS}, s14 sc1")
    A("s_mov_b64 exec, -1")
    A("s_branch L_attn")

    A.reset(); A.vm = ssm_vm
    A.label("L_ssm")
    sWp, sCHL, sNH = sW4, sHI, sLO
    sCH, sTAB, sKXb, sU, sF1 = 100, 84, 85, 86, 87
    tag_load()
    A(f"s_lshl_b32 s{sCH}, s{sID}, 1"); A(f"s_add_u32 s{sCH}, s{sCH}, s{sCHL}")
    srd(rWS, pWs, WS_SIZE); srd(rWO, pWo, 0x80000); srd(rOUT, pOut, 0x200000)
    ZR = 28
    for r in range(ZR, ZR + 4): A(f"v_mov_b32 v{r}, 0")
    A.c("zero the LDS flags and the negative-index part of the K planes")
    A("v_and_b32 v1, 3, v0"); A("v_lshlrev_b32 v1, 4, v1"); A(f"v_add_u32 v1, {L_FL}, v1")
    A(f"ds_write_b128 v1, {vr(ZR,4)}")
    A("v_and_b32 v1, 31, v0"); A("v_lshlrev_b32 v1, 4, v1"); A("v_lshrrev_b32 v15, 5, v0")
    A("v_mul_u32_u24 v12, 4608, v15"); A("v_add_u32 v1, v1, v12"); A(f"v_add_u32 v1, {L_KX}, v1")
    A(f"ds_write_b128 v1, {vr(ZR,4)}")
    A(f"s_mul_i32 s{sU}, s{sCHL}, {SSM_CH}"); A(f"s_add_u32 s{sU}, s{sU}, {L_SSM}")
    assert cfg.nd <= 2
    A(f"s_lshl_b32 s8, s{sWp}, 13"); A(f"s_add_u32 s{sTAB}, s8, {L_TAB}")
    A(f"s_mul_i32 s{sKXb}, s{sCHL}, 4608"); A(f"s_add_u32 s{sKXb}, s{sKXb}, {L_KX}")
    A.c("zero heads of two of the shifted copies of u")
    A("v_and_b32 v1, 7, v0"); A("v_min_u32 v1, 6, v1"); A("v_lshlrev_b32 v1, 3, v1"); A("v_bfe_u32 v12, v0, 3, 1"); A("v_mul_u32_u24 v12, 4160, v12")
    A(f"s_mul_i32 s8, s{sNH}, 8320"); A(f"s_add_u32 s8, s8, s{sU}"); A("v_add3_u32 v19, v1, v12, s8")
    A.c("two halves of a 32x32 identity as MFMA operands")
    ID = 220
    A("v_and_b32 v1, 1, v0"); A("v_lshlrev_b32 v1, 4, v1"); A("v_mov_b32 v16, 0x3f80"); A("v_lshlrev_b32 v16, v1, v16")
    A("v_bfe_u32 v1, v0, 1, 4"); A("v_lshlrev_b32 v17, 2, v15"); A("v_sub_u32 v1, v1, v17")
    for k in range(0, 8, 2):
        A(f"v_cmp_eq_u32 vcc, {8*(k >> 2) + (k & 3)}, v1"); A(f"v_cmp_eq_u32 s[8:9], {8*(k >> 2) + (k & 3) + 1}, v1")
        A(f"v_cndmask_b32 v{ID+k}, 0, v16, vcc"); A(f"v_cndmask_b32 v{ID+k+1}, 0, v16, s[8:9]")
    A.c("x transpose addresses: v8..11 read, v12 store")
    A("v_lshrrev_b32 v18, 4, v0"); A("v_bfe_u32 v16, v0, 2, 2"); A("v_lshl_add_u32 v1, v18, 4, v16"); A("v_lshlrev_b32 v1, 7, v1")
    A("v_bfe_u32 v16, v0, 1, 1"); A("v_bfe_u32 v17, v0, 3, 1"); A("v_xor_b32 v16, v16, v17")
    A(f"s_lshl_b32 s8, s{sWp}, 1"); A("v_or_b32 v16, s8, v16"); A("v_lshl_add_u32 v1, v16, 4, v1")
    A(f"s_lshl_b32 s8, s{sPR}, 13"); A(f"s_add_u32 s8, s8, {slot_of(0) * SLOT}"); A("v_add_u32 v1, s8, v1")
    A("v_and_b32 v16, 1, v0"); A("v_lshl_add_u32 v8, v16, 3, v1")
    for i in range(1, 4): A(f"v_xor_b32 v{8+i}, {32*i}, v8")
    A("v_and_b32 v1, 14, v0"); A(f"v_mul_u32_u24 v1, {XT_STRIDE}, v1"); A("v_lshl_add_u32 v1, v18, 5, v1"); A("v_lshl_add_u32 v12, v16, 4, v1")
    A(f"s_lshl_b32 s8, s{sROT}, 2"); A(f"s_add_u32 s8, s8, s{sWp}"); A(f"s_mul_i32 s14, s8, {16 * XT_STRIDE}")
    A(f"s_lshl_b32 s9, s{sTB}, 7"); A("s_add_u32 s14, s14, s9"); A(f"s_add_u32 s15, s14, {XT_STRIDE}")
    A("s_lshl_b32 s8, s8, 5"); A(f"s_add_u32 s8, s8, s{sTB}"); A(f"s_lshl_b32 s8, s8, {cfg.f1sh}"); A(f"s_add_u32 s{sF1}, s8, {WS_F1}")
    A(f"s_lshl_b32 s{sF3}, s{sID}, 4"); A(f"s_lshl_b32 s9, s{sWp}, 2"); A(f"s_add_u32 s{sF3}, s{sF3}, s9"); A(f"s_add_u32 s{sF3}, s{sF3}, {WS_F3}")
    A.c("exchange addresses v249 (write) v250 (read); K plane write address v251")
    A(f"s_lshl_b32 s8, s{sWp}, 11"); A("s_xor_b32 s9, s8, 2048"); A(f"s_add_u32 s8, s8, {L_EX}"); A(f"s_add_u32 s9, s9, {L_EX}")
    A("v_lshl_add_u32 v249, v0, 4, s8"); A("v_lshl_add_u32 v250, v0, 4, s9")
    A(f"v_lshl_add_u32 v251, v0, 4, s{sKXb}")
    A("s_mov_b32 s10, 0xaaaaaaaa"); A("s_mov_b32 s11, 0xaaaaaaaa")

    def cmul(d, a, b):
        A(f"v_pk_mul_f32 {vr(d,2)}, {vr(a,2)}, {vr(b,2)} op_sel:[0,0] op_sel_hi:[1,0]")
        A(f"v_pk_fma_f32 {vr(d,2)}, {vr(a,2)}, {vr(b,2)}, {vr(d,2)} op_sel:[1,1,0] op_sel_hi:[0,1,1] neg_lo:[0,1,0]")
    Z1, Z256, Z2, Z4 = 32, 34, 36, 38
    YV, XV = 48, 48
    Z8 = YV + 2
    xl = [0, 1, 2, 3, 4, 5, 6, 7, 256, 258, 260, 262, 264, 512, 516, 520, 768, 772, 776, 1024, 1032, 1280, 1288, 1536, 1544, 1792, 1800]
    XR = {l: XV + 2 * i for i, l in enumerate(xl)}
    A(f"v_mov_b32 v{YV}, 1.0"); A(f"v_mov_b32 v{YV+1}, 0")
    A.c("parameters")
    A.wait(vm="par")
    stamp("par")
    for r in (pL, pAr, pAi): A(f"v_lshlrev_b32 v{r}, 16, v{r}")
    L2E = math.log2(math.e)
    l2e_hi = struct.unpack("<f", struct.pack("<f", L2E))[0]; l2e_lo = L2E - l2e_hi
    A(f"s_mov_b32 s8, {f32(l2e_hi)}")
    A(f"v_mul_f32 v16, s8, v{pL}")
    A(f"v_fma_f32 v17, v{pL}, s8, -v16")
    A(f"v_fmac_f32 v17, {f32(l2e_lo)}, v{pL}")
    A("v_exp_f32 v16, v16")
    A(f"v_mul_f32 v17, {f32(math.log(2))}, v17")
    A("v_fmac_f32 v16, v16, v17")
    A("v_cvt_pk_bf16_f32 v16, v16, v16")
    A(f"v_lshlrev_b32 v{pL}, 16, v16")
    A(f"v_mul_f32 v{pAr}, v{pL}, v{pAr}"); A(f"v_mul_f32 v{pAi}, v{pL}, v{pAi}")
    A(f"v_mul_f32 v{pAr}, s8, v{pAr}")
    A(f"v_mul_f32 v{pAi}, 0.15915494, v{pAi}")
    def zpow(z, p):
        if p != 1.0:
            A(f"v_mul_f32 v16, {f32(p)}, v{pAr}"); A(f"v_mul_f32 v17, {f32(p)}, v{pAi}")
            A("v_exp_f32 v16, v16"); A("v_fract_f32 v17, v17")
        else:
            A(f"v_exp_f32 v16, v{pAr}"); A(f"v_fract_f32 v17, v{pAi}")
        A(f"v_cos_f32 v{z}, v17"); A(f"v_sin_f32 v{z+1}, v17")
        A(f"v_mul_f32 v{z}, v16, v{z}"); A(f"v_mul_f32 v{z+1}, v16, v{z+1}")
    YF, XFr, KA = 156, 188, 32
    def pack(dst, jj, part, regs, neg):
        t = dst + 16 * part + 4 * jj
        sg = "-" if (neg and part) else ""
        for i in range(4): A(f"v_cvt_pk_bf16_f32 v{t+i}, {sg}v{regs[2*i]+part}, {sg}v{regs[2*i+1]+part}")
    Y = lambda m: cmul(YV + 2*m, YV + 2*(m - 1), Z8)
    DT = 104
    def transpose(T, prod):
        L = []
        for p in range(2):
            for sx in range(2):
                for k in range(4): L.append(f"v_permlane32_swap_b32 v{T+16*p+8*sx+k}, v{T+16*p+8*sx+4+k}")
        for nb in range(2):
            for p in range(2):
                d = vr(DT + 16*p, 16)
                for sx in range(2): L += [f"v_mfma_f32_32x32x16_bf16 {d}, {vr(T+16*p+8*sx+4*nb,4)}, {vr(ID+4*sx,4)}, {d if sx else 0}", None]
            L += [None]
            for q in range(5):
                if q < 4: L += [f"v_cvt_pk_bf16_f32 v{T+8*q+4*nb+b}, v{DT+4*q+b}, v{DT+16+4*q+b}" for b in range(4)]
                if prod and q:
                    o = 8*(q - 1) + 4*nb
                    L.append(f"v_mfma_f32_32x32x16_bf16 {vr(KA,16)}, {vr(XFr+o,4)}, {vr(YF+o,4)}, {'0' if o == 0 else vr(KA,16)}")
                    if q == 4: L += [None]
        return L
    def weave(M, V, n):
        out = []
        for t in M:
            if t is None: out += V[:n]; V = V[n:]
            else: out.append(t)
        return out + V
    yr = lambda jj: [YV + 2 * (8 * jj + i) for i in range(8)]
    xr = [[XR[l] for l in t] for t in ((0, 1, 2, 3, 256, 256, 258, 260), (4, 5, 6, 7, 260, 260, 262, 264),
                                       (512, 516, 520, 1024, 768, 772, 776, 1280), (1032, 1536, 1544, 1544, 1288, 1792, 1800, 1800))]
    A.c("tables: Y = z^(8m), X = c z^l1; K[l1 + 8m] = Re sum_n X Y")
    zpow(Z8, 8.0)
    for m in range(2, 8): Y(m)
    for jj in range(4):
        for part in range(2):
            pack(YF, jj, part, yr(jj), False)
            if jj < 3:
                for m in range(8*jj + 8 + 4*part, 8*jj + 12 + 4*part): Y(m)
            elif part == 0:
                zpow(Z1, 1.0)
    zpow(Z256, 256.0)
    cmul(Z2, Z1, Z1); cmul(Z4, Z2, Z2)
    A(f"v_mov_b32 v40, v{Z8}"); A(f"v_mov_b32 v41, v{Z8+1}")
    Z8 = 40
    seq = [[(0, None, None), (1, 0, Z1), (2, 1, Z1), (3, 2, Z1), (256, 0, Z256), (258, 256, Z2), (260, 256, Z4)],
           [(4, 0, Z4), (5, 1, Z4), (6, 2, Z4)], [(7, 3, Z4), (262, 260, Z2), (264, 256, Z8)],
           [(512, 256, Z256), (516, 512, Z4), (520, 512, Z8), (768, 512, Z256)], [(772, 768, Z4), (776, 768, Z8), (1024, 768, Z256), (1280, 1024, Z256)],
           [(1032, 1024, Z8), (1288, 1280, Z8), (1536, 1280, Z256)], [(1544, 1536, Z8), (1792, 1536, Z256), (1800, 1792, Z8)], []]
    early = sum(seq, [])[:cfg.xpre]
    def xprep():
        for r in (pBr, pBi, pCr, pCi): A(f"v_lshlrev_b32 v{r}, 16, v{r}")
        A(f"v_mul_f32 v{pBr}, v{pL}, v{pBr}"); A(f"v_mul_f32 v{pBi}, v{pL}, v{pBi}")
    xops = lambda l, src, z: (XR[0], pCr, pBr) if src is None else (XR[l], XR[src], z)
    def xchain():
        def cm(d, a, b):
            A(f"v_mul_f32 v{d}, v{a}, v{b}"); A(f"v_mul_f32 v{d+1}, v{a+1}, v{b}")
            A(f"v_fma_f32 v{d}, -v{a+1}, v{b+1}, v{d}"); A(f"v_fmac_f32 v{d+1}, v{a}, v{b+1}")
        if not early: xprep()
        for k in range(8):
            for e in seq[k]:
                if e not in early: cm(*xops(*e))
            pack(XFr, k >> 1, k & 1, xr[k >> 1], True)
    if early:
        if cfg.xdma: dma_until(dend[0] + cfg.lead0, 0)
        A.wait(vm="par2")
        xprep()
        for e in early: cmul(*xops(*e))
    tag_finish()
    A(f"s_setprio {cfg.sprio}")
    def seg(b, nf=cfg.fill):
        lim = dend[b] + cfg.lead
        lim = min(lim, dend[b + 2] if b + 2 < 8 else len(DMA))
        if b == 6: lim = len(DMA)
        dma_until(lim, nf)
    dma_until(dend[0] + cfg.lead0, cfg.fill0)
    barrier("B0")
    A.c("transpose this workgroup's first x chunk; keep the ring fed")
    XT0, XT1 = 236, 148
    for i in range(4): A(f"ds_read_b64_tr_b16 {vr(XT0+2*i,2)}, v{8+i} offset:{512*i}")
    A.wait(vm=["par2", "par3"])
    A(f"v_lshlrev_b32 v{pD}, 16, v{pD}")
    queued(xchain)
    setv, sets = attn_setup()
    dst = lambda t: int(t.split()[1].strip(",")[1:]) if t.split()[1][1].isdigit() else 0
    nmov = max(i for i, t in enumerate(setv) if t.startswith(f"v_mov_b32 v{STG[P-1]+11},")) + 1
    sa = [t for t in setv[:nmov] if not DT <= dst(t) < DT + 32]
    sb = [t for t in setv[:nmov] if DT <= dst(t) < DT + 32] + setv[nmov:]
    FILL[:] = weave(transpose(YF, False), list(FILL), cfg.wv) + weave(transpose(XFr, True), sa, cfg.wv) + sb
    if cfg.noconv & 64: FILL[:] = sa + sb
    if cfg.noconv & 128: FILL[:] = [t for t in FILL if "mfma" not in t]
    dma_until(min(dptr[0] + cfg.xtd, dend[3]), cfg.fill)
    A("s_not_b64 vcc, s[10:11]")
    A("s_waitcnt lgkmcnt(0)")
    for k in range(4): A(f"v_cndmask_b32_dpp v{XT1+k}, v{XT0+4+k}, v{XT0+k}, vcc quad_perm:[1,0,3,2] row_mask:0xf bank_mask:0xf")
    A("s_mov_b64 vcc, s[10:11]")
    for k in range(4): A(f"v_cndmask_b32_dpp v{XT1+4+k}, v{XT0+k}, v{XT0+4+k}, vcc quad_perm:[1,0,3,2] row_mask:0xf bank_mask:0xf")
    for j in range(0 if cfg.noxt else 2): A(f"buffer_store_dwordx4 {vr(XT1+4*j,4)}, v12, {WS}, s{14+j} offen {cfg.xtsc}", "xts")
    seg(1)
    barrier("B1")
    seg(2)
    A.wait(vm=[("st", 2)])
    barrier("B2")
    dma_until(dptr[0] + (1 if cfg.gx else 2), cfg.fill)
    A.wait(vm="xts")
    stamp("sig1")
    if cfg.f1full:
        A(f"v_mov_b32 v2, s{sTAG}"); A("v_and_b32 v8, 31, v0"); A("v_lshlrev_b32 v8, 2, v8")
        A(f"buffer_store_dword v2, v8, {WS}, s{sF1} offen sc1")
    else: gflag(sF1, 2, HS)
    seg(3)
    A.wait(vm=[("st", 3)])
    barrier("B3")
    seg(4)
    A.wait(vm=[("st", 4)])
    barrier("B4")
    A("v_and_b32 v17, 31, v0"); A(f"v_lshlrev_b32 v17, {cfg.f1sh}, v17")
    A(f"s_lshr_b32 s15, s{sCH}, 4"); A(f"s_lshl_b32 s15, s15, {5 + cfg.f1sh}"); A(f"s_add_u32 s15, s15, {WS_F1}")
    pl = f"buffer_load_dword v18, v17, {WS}, s15 offen sc1"
    if cfg.f1at == 3: A(pl, "f1")
    seg(5)
    if cfg.f1at == 4: A(pl, "f1")
    A.wait(vm=[("st", 5)])
    barrier("B5")
    seg(6)
    if cfg.f1at == 5: A(pl, "f1")
    fill(999)
    A.c("Dskip only on lane 0")
    A("v_cmp_eq_u32 vcc, 0, v0"); A(f"v_cndmask_b32 v{pD}, 0, v{pD}, vcc")
    A.c("conv addresses")
    vUA, vKB, vUW = 252, 253, 10
    A("v_and_b32 v1, 3, v0"); A("v_sub_u32 v1, 3, v1"); A("v_mul_u32_u24 v1, 4160, v1")
    A("v_bfe_u32 v2, v0, 2, 2"); A("v_lshl_add_u32 v1, v2, 3, v1")
    A("v_lshrrev_b32 v2, 4, v0"); A("v_lshl_add_u32 v1, v2, 4, v1")
    A(f"s_lshl_b32 s9, s{sNH}, 8"); A(f"s_add_u32 s8, s{sU}, s9"); A("s_add_u32 s8, s8, 40")
    A(f"v_add_u32 v{vUA}, s8, v1")
    A("v_and_b32 v1, 15, v0"); A("v_lshlrev_b32 v1, 1, v1"); A("v_sub_u32 v1, v1, v2"); A("v_lshlrev_b32 v1, 4, v1")
    A(f"s_sub_u32 s8, s{sKXb}, s9"); A("s_add_u32 s8, s8, 16")
    A(f"v_add_u32 v{vKB}, s8, v1")
    A.wait(vm=[("st", 6)])
    barrier("B6")
    if cfg.f1at == 6: A(pl, "f1")
    A("v_lshlrev_b32 v16, 4, v0")
    A(f"s_lshl_b32 s9, s{sNH}, 11"); A(f"s_add_u32 s8, s{sU}, s9"); A("s_add_u32 s8, s8, 64")
    A(f"v_add_u32 v{vUW}, s8, v16")
    A(f"s_mul_i32 s14, s{sCH}, {XT_STRIDE}"); A("s_add_u32 s14, s14, s9")
    A(f"s_lshl_b32 s9, s{sNH}, 3"); A("s_sub_u32 s101, s14, s9")
    A(f"s_lshl_b32 s13, s{sCHL}, 2"); A(f"s_add_u32 s12, s13, {L_FL + FL_CV}"); A(f"s_add_u32 s{sF1}, s13, {L_FL + FL_P1}"); A(f"s_add_u32 s13, s13, {L_FL + FL_P2}")
    UD, UP = 236, 228
    def uloads():
        for i in range(2): A(f"buffer_load_dwordx4 {vr(UD+4*i,4)}, v16, {WS}, s14 offen offset:{1024*i} sc1")
        A(f"buffer_load_dwordx2 {vr(UP,2)}, off, {WS}, s101 sc1")
    def utry():
        A.c("if the 32 slices of this channel's row are already out, fetch this wave's half now")
        A.wait(vm="f1")
        A(f"v_cmp_ne_u32 vcc, s{sTAG}, v18")
        A(f"s_or_b32 s{sSLOW}, vcc_lo, vcc_hi")
        lb = A.newlabel("nou")
        A(f"s_cbranch_scc1 {lb}")
        h = list(A.hist); n = len(A.vm)
        uloads()
        A.hist = h; del A.vm[n:]
        A.label(lb)
    if cfg.uat == 6: utry()
    A.c("conv exchange goes through this wave's own table space")
    A(f"s_xor_b32 s8, s{sTAB}, 8192"); A(f"v_add_u32 v246, s{sTAB}, v16"); A("v_add_u32 v247, s8, v16")
    A("v_and_b32 v1, 15, v0"); A("v_lshlrev_b32 v1, 5, v1"); A("v_lshrrev_b32 v2, 5, v0"); A("v_lshl_add_u32 v1, v2, 4, v1")
    A("v_bfe_u32 v2, v0, 4, 1"); A("v_lshl_add_u32 v248, v2, 9, v1")
    A(f"s_lshl_b32 s{sCH}, s{sCH}, 12"); A(f"s_lshl_b32 s9, s{sNH}, 11"); A(f"s_add_u32 s{sCH}, s{sCH}, s9"); A(f"s_add_u32 s{sCH}, s{sCH}, {WS_AT}")
    for t in sets: A(t)
    if cfg.uat == 6:
        n = A._cnt(A.vm, [("st", 7)])
        if n is not None: two_way(sSLOW, lambda: A(f"s_waitcnt vmcnt({n + 3})"), lambda: A(f"s_waitcnt vmcnt({n})"))
    A.wait(vm=[("st", 7)] + ([("st", 8)] if cfg.q7 else []))
    barrier("B7")
    if cfg.uat == 7:
        A.wait(vm=[("st", 8)])
        if cfg.b8first: barrier("B8")
        utry()
    else:
        two_way(sSLOW, lambda: A("s_waitcnt vmcnt(3)"), lambda: A("s_waitcnt vmcnt(0)"))
        if cfg.b8first: barrier("B8")
    def kexch():
        def f0():
            A(f"ds_write_b128 v249, {vr(KA+8,4)}"); A(f"ds_write_b128 v249, {vr(KA+12,4)} offset:1024")
            A(f"v_add_f32 v{KA}, v{KA}, v{pD}")
        def f1():
            A(f"ds_write_b128 v249, {vr(KA,4)}"); A(f"ds_write_b128 v249, {vr(KA+4,4)} offset:1024")
        two_way(sNH, f0, f1)
        if cfg.kx7: A("s_waitcnt lgkmcnt(0)")
        else: lds_signal(f"s{sF1}", 1)
    UV = []; UWr = []
    for k in range(2): UV.append(f"v_mul_lo_u32 v{UP+k}, v{UP+k}, s{sNH}")
    for k in range(2): UV.append(f"v_mov_b32_dpp v{UP+2+k}, v{UD+2+k} wave_ror:1 row_mask:0xf bank_mask:0xf")
    for i in range(2):
        d = UD + 4 * i; p = UP + 2 * i; o = 188 + 12 * i; o2 = o + 8
        for k in range(2): UV.append(f"v_mov_b32_dpp v{p+k}, v{d+2+k} wave_shr:1 row_mask:0xf bank_mask:0xf")
        sq = [p, p + 1, d, d + 1, d + 2, d + 3]
        for k in (3, 2, 1, 0): UV.append(f"v_alignbit_b32 v{o+k}, v{sq[k+2]}, v{sq[k+1]}, 16")
        for k in range(4): UV.append(f"v_mov_b32 v{o+4+k}, v{sq[k+1]}")
        for k in range(4): UV.append(f"v_alignbit_b32 v{o2+k}, v{sq[k+1]}, v{sq[k]}, 16")
        UWr += [f"ds_write_b128 v{vUW}, {vr(r,4)} offset:{4160*c + 1024*i}" for c, r in enumerate((d, o, o + 4, o2))]
    US = UV[:18]
    for k in range(8): US += [UWr[k]] + UV[18 + 4*k: 22 + 4*k]
    assert ("st", 8) not in A.vm and not (cfg.kx7 and cfg.b8first)
    if cfg.upre >= 0: A(f"s_setprio {cfg.kgenprio}")
    if cfg.kx7: kexch()
    npre_u = US.index(UWr[cfg.upre]) if 0 <= cfg.upre < 8 else len(US)
    if cfg.upre >= 0:
        lb = A.newlabel("noupre")
        A(f"s_cmp_lg_u32 s{sSLOW}, 0"); A(f"s_cbranch_scc1 {lb}")
        A("s_waitcnt vmcnt(0)")
        for t in US[:npre_u]: A(t)
        A.label(lb); A.lg = []
    if not cfg.b8first: barrier("B8")
    if cfg.p1only:
        dump_stamps(); A("s_endpgm")
    A(f"s_setprio {cfg.kgenprio}")
    A.c("LDS writes resume now that the DMA stream and its readers are done")
    if not cfg.kx7: kexch()
    else: A("ds_read_b128 v[156:159], v250", "kx"); A("ds_read_b128 v[160:163], v250 offset:1024", "kx")
    A(f"ds_write_b64 v19, {vr(ZR,2)} offset:8")
    if cfg.kgenprio2 is not None: A(f"s_setprio {cfg.kgenprio2}")
    lb = A.newlabel("uok")
    A(f"s_cmp_eq_u32 s{sSLOW}, 0"); A(f"s_cbranch_scc1 {lb}")
    lg_ = list(A.lg); stamp("f1slow"); A.lg = lg_
    poll(pl, 18, sleep=2)
    uloads()
    if cfg.upre >= 0:
        A("s_waitcnt vmcnt(0) lgkmcnt(0)")
        for t in US[:npre_u]: A(t)
        A("s_waitcnt lgkmcnt(0)")
        A.lg = lg_
    A.label(lb)
    A.c("finish K: add the partner's half, expand to the 2048 taps")
    def f0():
        for r in range(8): A(f"v_add_f32 v{KA+r}, v{KA+r}, v{156+r}")
        for i in range(4): A(f"v_cvt_pk_bf16_f32 v{156+i}, v{KA+7-2*i}, v{KA+6-2*i}")
        A("ds_write_b128 v251, v[156:159] offset:512")
    def f1():
        for r in range(7): A(f"v_add_f32 v{KA+8+r}, v{KA+8+r}, v{156+r}")
        a, b, c = KA + 8, KA + 9, KA + 10
        for i, (p, q_) in enumerate(((c, c), (b, b), (b, a), (a, a))): A(f"v_cvt_pk_bf16_f32 v{156+i}, v{p}, v{q_}")
        A(f"ds_write_b128 v251, v[156:159] offset:{512 + 2*512}")
        for e in range(2):
            a, b = KA + 11 + 2 * e, KA + 12 + 2 * e
            t = 160 + 4 * e
            A(f"v_cndmask_b32 v{KA}, v{a}, v{b}, s[10:11]")
            for i, (p, q_) in enumerate(((b, b), (b, KA), (a, a), (a, a))): A(f"v_cvt_pk_bf16_f32 v{t+i}, v{p}, v{q_}")
            A(f"ds_write_b128 v251, {vr(t,4)} offset:{512 + (4 + 2*e)*512}")
    def ucopies(nw):
        A("s_waitcnt vmcnt(0)")
        stamp("uld", 2)
        for _ in range(18): A(UV.pop(0))
        for k in range(nw):
            A(UWr.pop(0))
            for _ in range(4):
                if UV: A(UV.pop(0))
    if cfg.ufirst: ucopies(5)
    if not cfg.kx7:
        lds_wait(f"s{sF1}", 2, 1)
        A("ds_read_b128 v[156:159], v250", "kx"); A("ds_read_b128 v[160:163], v250 offset:1024", "kx")
    if cfg.ufirst:
        for _ in range(3): A(UWr.pop(0))
    A.wait(lg="kx")
    two_way(sNH, f0, f1)
    stamp("kgen", 2)
    if cfg.upre >= 0:
        for t in US[npre_u:]: A(t)
    elif not cfg.ufirst: ucopies(8)
    lds_signal("s13", 1)
    stamp("t5", 3)
    if cfg.wopf:
        A.c("touch 1/1024 of wo so that it waits in the memory-side cache")
        A(f"s_lshl_b32 s8, s{sID}, 2"); A(f"s_add_u32 s8, s8, s{sWp}"); A("s_lshl_b32 s8, s8, 9")
        A("v_and_b32 v1, 3, v0"); A("v_lshlrev_b32 v1, 7, v1")
        A(f"buffer_load_dword v254, v1, s[{rWO}:{rWO+3}], s8 offen")
    zero_o(ZR)
    lds_wait("s13", 2, 1)
    stamp("conv0")
    C0, C1, CF = 156, 172, 188
    prods = [(sp, jj, d) for sp in range(4) for jj in range(8) for d in range(7 - jj, -1, -1)]
    if cfg.noconv & 1: prods = prods[:8]
    last = {}; order = []
    for k, (sp, jj, d) in enumerate(prods):
        for fr in (("U", sp, jj), ("K", sp, d)):
            if fr not in last: order.append(fr)
            last[fr] = k
    pool = [16 + 4 * i for i in range(8)] + [CF + 4 * i for i in range(8)]
    free = {"K": pool[:cfg.nkb], "U": pool[cfg.nkb:cfg.nkb + cfg.nub]}
    assert cfg.nkb + cfg.nub <= 16 and cfg.prog
    reg = {}; pend = []
    def feed(n):
        while n > 0 and len(A.lg) < 13:
            if not pend:
                if not order or not free[order[0][0]]: return
                fr = order.pop(0); r = reg[fr] = free[fr[0]].pop(0)
                if fr[0] == "K": pend.append((f"ds_read_b128 {vr(r,4)}, v{vKB} offset:{(32 + 32*fr[2] - 4*fr[1]) * 16}", fr))
                else: pend.extend((f"ds_read_b64 {vr(r+2*h,2)}, v{vUA} offset:{64*(fr[1] + 8*fr[2]) + 8*h}", fr) for h in range(2))
            A(*pend.pop(0)); n -= 1
    def product(k):
        sp, jj, d = prods[k]
        u, kk = ("U", sp, jj), ("K", sp, d)
        while u not in reg or kk not in reg or any(p[1] in (u, kk) for p in pend):
            if len(A.lg) >= 13: A("s_waitcnt lgkmcnt(10)")
            feed(1)
        if u in A.lg or kk in A.lg:
            n = len(A.lg) - 1 - max(i for i, t in enumerate(A.lg) if t in (u, kk))
            A(f"s_waitcnt lgkmcnt({min(n, cfg.cwait)})")
        acc = vr(C0 + 4 * (jj + d), 4)
        A(f"v_mfma_f32_16x16x32_bf16 {acc}, {vr(reg[u],4)}, {vr(reg[kk],4)}, {'0' if sp == 0 and jj == 0 else acc}")
        for fr in (u, kk):
            if last[fr] == k: free[fr[0]].append(reg[fr])
    A(f"s_setprio {cfg.convprio}")
    feed(12)
    pl2 = f"buffer_load_dword v229, v228, {WS}, 0 offen sc1"
    def w4_only(f):
        lb = A.newlabel("w4")
        A(f"s_cmp_lg_u32 s{sWp}, 0"); A(f"s_cbranch_scc1 {lb}")
        h = list(A.hist); f(); A.hist = h
        A.label(lb)
    if cfg.prog:
        for t in f2_addr(228, False): A(t)
    c0 = min(cfg.c0, len(prods))
    def start():
        if cfg.pollprio is not None: A(f"s_setprio {cfg.pollprio}")
        if cfg.prog:
            def f():
                poll(pl2, 229, sleep=cfg.psleep, first_issued=True)
                lds_signal(FL_K2, 244); A.lg.pop()
            w4_only(f)
        if cfg.startprio is not None: A(f"s_setprio {cfg.startprio}")
        attn_start([FL_K2, FL_KR] if cfg.prog else [FL_KR])
    for k in range(len(prods)):
        if k == c0:
            start()
            if cfg.startprio is not None: A(f"s_setprio {cfg.convprio}")
        if cfg.prog and k == c0 - cfg.pa: w4_only(lambda: A(pl2))
        product(k)
        feed(1)
    stamp("conv1")
    def first():
        A(f"s_setprio {cfg.prio[1][0][1]}")
        A.wait(vm=[("k", 0)], lg="qf")
        stamp("att0")
        qk(0, 0)
    i = 0
    def wr(send): return lambda: [A(f"ds_write_b128 v246, {vr(send+4*k,4)} offset:{1024*k}") for k in range(4)]
    def e0():
        two_way(sNH, wr(C1), wr(C0))
        lds_signal("s12", 244)
    def e1():
        lds_wait("s12", 2, 244)
        for k in range(4): A(f"ds_read_b128 {vr(CF+4*k,4)}, v247 offset:{1024*k}")
    def fin(keep):
        def f():
            for r in range(16): A(f"v_add_f32 v{keep+r}, v{keep+r}, v{CF+r}")
            for k in range(8): A(f"v_cvt_pk_bf16_f32 v{204+k}, v{keep+2*k}, v{keep+2*k+1}")
        return f
    def e2():
        A("s_waitcnt lgkmcnt(0)")
        two_way(sNH, fin(C0), fin(C1))
        for k in (0, 1, 4, 5): A(f"v_permlane16_swap_b32 v{204+k}, v{206+k}")
        n = len(A.vm)
        A(f"buffer_store_dwordx4 {vr(204,4)}, v248, {WS}, s{sCH} offen sc1")
        A(f"buffer_store_dwordx4 {vr(208,4)}, v248, {WS}, s{sCH} offen offset:1024 sc1")
        del A.vm[n:]
        stamp("convdone")
    if c0 == len(prods): start()
    first()
    tile(0, {12: [e0], 44: [e1], 60: [e2]}); i = 1
    JM = i
    s_vm = list(A.vm)
    A("s_branch L_merge")

    A.label("L_attn")
    A.reset(); A.vm, A.lg = g_state
    def prio_point(n):
        T = []
        for kh in range(2):
            for tn, p in cfg.prio[kh]:
                if tn is not None and 4 * NT - tn == n:
                    assert n >= 4 * JM
                    def f(kh=kh, p=p):
                        lb = A.newlabel("pr")
                        A(f"s_cmp_lg_u32 s{sKH}, {kh}"); A(f"s_cbranch_scc1 {lb}")
                        h = list(A.hist); A(f"s_setprio {p}"); A.hist = h
                        A.label(lb)
                    T.append(f)
        return T
    A(f"s_setprio {cfg.prio[0][0][1]}")
    A.wait(vm=[("k", 0)], lg="qf")
    stamp("att0")
    qk(0, 0)
    assert J2 < wo_at[0][0] and JM + P - 1 <= J1
    for i in range(NT):
        if i == JM:
            assert A.vm == s_vm
            A.label("L_merge")
        X = {16 * u: prio_point(4 * i + u) for u in range(4)}
        X[12] = []
        if i in (2, 4, 8, 12): X[0] = X[0] + [lambda i=i: stamp(f"it{i}", 1.2)]
        if i == 4 - P + 1:
            def k2():
                lb = A.newlabel("nok2")
                A(f"s_cmp_lg_u32 s{sKH}, 0"); A(f"s_cbranch_scc1 {lb}")
                h = list(A.hist); lds_wait(FL_K2, 1, 244); A.hist = h
                A.label(lb)
            X[0].append(k2)
        if i == JM + P - 1:
            def f3():
                lb = A.newlabel("nof3")
                A(f"s_cmp_eq_u32 s{sKH}, 0"); A(f"s_cbranch_scc1 {lb}")
                h = list(A.hist)
                gflag(sF3, 1)
                A.vm.pop(); A.hist = h
                A.label(lb)
            X[0].append(f3)
        if i == J1 - 1 and cfg.opf:
            X[12].append(lambda: A(f"buffer_load_dword v255, v{vKo}, {WS}, s{sOo} offen sc1"))
            X[12].append(lambda: A(f"buffer_load_dword v255, off, {WS}, s{sOf} sc1"))
        if i == J1: X[12] += [lambda l=l: A(l, "side") for l in side_ld]
        if i == J2:
            def sj():
                A.wait(vm="side")
                side_cmp()
                A("s_cbranch_vccnz L_side_slow")
                A.label("L_side_ok")
                A(f"v_cmp_ne_u32 vcc, s{sXCC}, v{SD+3}")
                A(f"s_add_u32 m0, s{sWOl}, {L_EX}")
                A(f"s_or_b32 s{sSLOW}, vcc_lo, vcc_hi")
                if not (cfg.noconv & 4): A(f"buffer_load_dwordx4 v{vAT}, {WS}, s{sATo} offen sc1 lds")
            X[12].append(sj)
        if i == J2 and not (cfg.noconv & 4):
            for k in range(4): X.setdefault(23 + 6 * k, []).append(lambda k=k: A(f"buffer_load_dword v{ZP+k}, v{vZL}, {WS}, s{sZo} offen offset:{128*k} sc1"))
        for r, (ti, sl) in enumerate(wo_at):
            if ti == i and not (cfg.noconv & 2):
                X.setdefault(sl, []).append(lambda r=r: A(f"s_add_u32 m0, s{sWOl}, {8192*r}"))
                X.setdefault(sl + 1, []).append(lambda: A(f"buffer_load_dwordx4 v{vWO}, s[{rWO}:{rWO+3}], s{sWOo} offen lds", "wo"))
                X[sl + 1].append(lambda: A(f"s_add_u32 s{sWOo}, s{sWOo}, 0x10000"))
        if i == NT - 1:
            for j, sl in enumerate((35, 51, 59)):
                def xa(j=j):
                    A(f"s_add_u32 s8, s{sW}, {2*j + 2}"); A("s_and_b32 s8, s8, 7"); A("s_mul_i32 s8, s8, 6912"); A(f"s_add_u32 s8, s8, {L_OX + 2304*j}")
                    A(f"v_add_u32 v244, s8, v{vKo}"); A(f"v_add_u32 v245, s8, v{vZA}")
                X.setdefault(sl, []).append(xa)
                X.setdefault(sl + 1, []).append(lambda j=j: A(f"ds_write_b32 v245, v{O[j]+8} offset:2048"))
                X.setdefault(sl + 2, []).append(lambda j=j: A(f"ds_write_b128 v244, {vr(O[j],4)}"))
                X.setdefault(sl + 4, []).append(lambda j=j: A(f"ds_write_b128 v244, {vr(O[j]+4,4)} offset:1024"))
        tile(i, X)
    sm(3, NT - 1, 1)
    A("s_setprio 3")
    stamp("att1")
    A.c("the other three waves' partial sums for this wave's query tile")
    A(f"s_mul_i32 s8, s{sW}, 6912"); A(f"s_add_u32 s8, s8, {L_OX}")
    A(f"v_add_u32 v246, s8, v{vKo}"); A(f"v_add_u32 v247, s8, v{vZA}")
    A(f"s_mov_b32 s12, {f32(2.0**-24)}"); A(f"s_mov_b32 s13, {f32(2.0**48)}"); A(f"s_mov_b32 s14, {f32(2.0**120)}")
    A("s_mov_b32 s15, 0")
    A("s_waitcnt vmcnt(0) lgkmcnt(0)")
    barrier("Ba")
    OB = O[3]
    for j in range(3): A(f"ds_read_b32 v{72+j}, v247 offset:{2304*j + 2048}", "xl")
    for j in range(3):
        for h in range(2): A(f"ds_read_b128 {vr(48+8*j+4*h,4)}, v246 offset:{2304*j + 1024*h}", ("x", j, h))
    A.wait(lg="xl")
    A("v_add_f32 v72, v72, v73"); A(f"v_add_f32 v{OB+8}, v{OB+8}, v74"); A(f"v_add_f32 v{OB+8}, v{OB+8}, v72")
    for j in range(3):
        for k in range(4):
            A.wait(lg=[("x", j, k >> 1)])
            A(f"v_pk_add_f32 {vr(OB+2*k,2)}, {vr(OB+2*k,2)}, {vr(48+8*j+2*k,2)}")
    A.label("L_norm")
    A(f"v_rcp_f32 v28, v{OB+8}")
    for k in range(4): A(f"v_pk_mul_f32 {vr(32+2*k,2)}, {vr(OB+2*k,2)}, {vr(28,2)} op_sel_hi:[1,0]")
    for i in range(4): A(f"v_cvt_pk_bf16_f32 v{20+i}, v{32+2*i}, v{33+2*i}")
    A.c("all eight workgroups of this token block on one die: hand O over through its L2; otherwise write through")
    def ost(sc): return lambda: A(f"buffer_store_dwordx4 v[20:23], v{vKo}, {WS}, s{sOo} offen {sc}")
    def oflag():
        A("s_waitcnt vmcnt(0)")
        A("s_mov_b64 exec, 1")
        A(f"v_mov_b32 v1, s{sTAG}")
        f = lambda sc: (lambda: A(f"buffer_store_dword v1, off, {WS}, s{sOf} {sc}"))
        if cfg.fast: two_way(sSLOW, f(cfg.ofsc), f("sc1"))
        else: f("sc1")()
        A("s_mov_b64 exec, -1")
        stamp("oflag")
    if cfg.fast: two_way(sSLOW, ost(cfg.ostsc), ost("sc1"))
    else: ost("sc1")()
    stamp("ost")
    A.c("the un-shifted exponentials are exact only while the row sum is far from overflow / underflow; else redo with the true row max")
    A(f"v_add_f32 v28, abs(v{OB}), abs(v{OB+1})")
    for r in range(2, 8): A(f"v_add_f32 v28, v28, abs(v{OB+r})")
    A(f"v_cmp_nle_f32 s[10:11], s12, v{OB+8}")
    A(f"v_cmp_nge_f32 s[92:93], s13, v{OB+8}")
    A("v_cmp_nge_f32 vcc, s14, v28")
    A("s_or_b64 s[10:11], s[10:11], s[92:93]")
    A("s_or_b64 s[10:11], s[10:11], vcc")
    if cfg.force_fallback: A("s_branch L_fallback")
    A("s_cbranch_scc1 L_fallback")
    A.label("L_checked")
    A(f"s_cmp_lg_u32 s{sKH}, 0"); A("s_cbranch_scc1 L_tail_b")

    WOF, OFR, AC, GA = 128, 64, 32, 16
    def wo_reads(f0, f1):
        if cfg.tx & 1: return
        for f in range(f0, f1):
            for ct in range(2):
                for i in range(2):
                    A(f"ds_read_b64_tr_b16 {vr(WOF + 8*f + 4*ct + 2*i, 2)}, v{4+ct} offset:{(f >> 2)*8192 + (16*(f & 3) + 8*i)*128}", ("w", f))
    for k in range(6): A(f"v_mov_b32 v{4+k}, v{TA+k}")
    A(f"v_mov_b32 v12, v{TA+6}")
    A.c("gate logit")
    A(f"v_pk_add_f32 {vr(ZP,2)}, {vr(ZP,2)}, {vr(ZP+2,2)}")
    A(f"v_add_f32 v{vG}, v{ZP}, v{ZP+1}")
    oflag()
    stamp_ = None
    pl = f"buffer_load_dword v14, v12, {WS}, s76 offen sc1"
    for i in range(4): A(f"ds_read_b64_tr_b16 {vr(GA+8+2*i,2)}, v6 offset:{512*i}", "a")
    wo_reads(0, cfg.wo0)
    poll(pl, 14, sleep=0)
    stamp("ordy")
    sig = [f"v_mov_b32 v2, v{vG}", "s_mov_b32 s10, 0xaaaaaaaa", "s_mov_b32 s11, 0xaaaaaaaa", f"v_permlane32_swap_b32 v{vG}, v2", f"v_add_f32 v{vG}, v{vG}, v2",
           f"v_mul_f32 v{vG}, {f32(-math.log2(math.e))}, v{vG}", f"v_exp_f32 v{vG}, v{vG}", f"v_add_f32 v{vG}, 1.0, v{vG}", f"v_rcp_f32 v{vG}, v{vG}", f"v_sub_f32 v10, 1.0, v{vG}"]
    def oload(f):
        if cfg.tx & 4 and f >= 4: return
        A(f"buffer_load_dwordx4 {vr(OFR+4*f,4)}, v{vKo}, {WS}, s87 offen offset:{(f & 1)*2048} {cfg.osc}", ("o", f))
        if f & 1 and f < 15: A("s_add_u32 s87, s87, 4096")
    LA = cfg.ola
    nw = cfg.wo0
    for f in range(LA):
        oload(f)
        if nw < 16: wo_reads(nw, nw + 1); nw += 1
    for t in sig: A(t)
    def keep(f):
        if not cfg.tx & 2: A(f"v_mfma_f32_32x32x16_bf16 {vr(AC+16,16)}, {vr(WOF+8*f+4,4)}, {vr(OFR+4*f,4)}, {'0' if f == 0 else vr(AC+16,16)}")
    for f in range(16):
        A.wait(vm=[("o", f)], lg=[("w", f), "a"])
        if not cfg.tx & 8: A(f"v_mfma_f32_32x32x16_bf16 {vr(AC,16)}, {vr(WOF+8*f,4)}, {vr(OFR+4*f,4)}, {'0' if f == 0 else vr(AC,16)}")
        if f + LA < 16: oload(f + LA)
        if f >= cfg.lag: keep(f - cfg.lag)
        if nw < 16: wo_reads(nw, nw + 1); nw += 1
        if 6 <= f < 14:
            k = f - 6
            A(f"v_lshlrev_b32 v{GA+2*k}, 16, v{GA+8+k}")
            A(f"v_and_b32 v{GA+2*k+1}, 0xffff0000, v{GA+8+k}")
            A(f"v_mul_f32 v{GA+2*k}, v{vG}, v{GA+2*k}"); A(f"v_mul_f32 v{GA+2*k+1}, v{vG}, v{GA+2*k+1}")
    stamp("omm", 2)
    rest = list(range(16 - cfg.lag, 16))
    if rest: keep(rest.pop(0))
    for i in range(4):
        A(f"ds_write_b128 v7, {vr(AC+4*i,4)} offset:{1024*i}")
        if rest: keep(rest.pop(0))
    for f in rest: keep(f)
    A("s_waitcnt lgkmcnt(0)")
    barrier()
    stamp("Bt")
    for i in range(4): A(f"ds_read_b128 {vr(AC+4*i,4)}, v8 offset:{1024*i}", ("p", i))
    pkf = lambda r, src: A(f"v_pk_fma_f32 {vr(GA+r,2)}, {vr(src+r,2)}, v[10:11], {vr(GA+r,2)} op_sel_hi:[1,0,1]")
    for r in range(0, 16, 2): pkf(r, AC + 16)
    A("s_not_b64 vcc, s[10:11]")
    for i in range(4):
        A.wait(lg=[("p", i)])
        for r in (4*i, 4*i+2): pkf(r, AC)
        for k in (2*i, 2*i+1): A(f"v_cvt_pk_bf16_f32 v{64+k}, v{GA+2*k}, v{GA+2*k+1}")
    A.c("lane pairs swap halves: two adjacent lanes store 32 contiguous bytes of one row")
    for k in range(4): A(f"v_cndmask_b32_dpp v{72+k}, v{68+k}, v{64+k}, vcc quad_perm:[1,0,3,2] row_mask:0xf bank_mask:0xf")
    A(f"buffer_store_dwordx4 v[72:75], v9, s[{rOUT}:{rOUT+3}], s100 offen {cfg.outsc}")
    A("s_mov_b64 vcc, s[10:11]")
    for k in range(4): A(f"v_cndmask_b32_dpp v{76+k}, v{64+k}, v{68+k}, vcc quad_perm:[1,0,3,2] row_mask:0xf bank_mask:0xf")
    A(f"buffer_store_dwordx4 v[76:79], v9, s[{rOUT}:{rOUT+3}], s100 offen offset:1024 {cfg.outsc}")
    A.c("by now every wave of the grid has read the old tag")
    lb = A.newlabel("notag")
    A(f"s_or_b32 s8, s{sID}, s{sW}"); A(f"s_cbranch_scc1 {lb}")
    A(f"s_mov_b32 s8, {WS_NONCE}")
    gflag(8, 1)
    A.label(lb)
    dump_stamps()
    A("s_endpgm")

    A.reset()
    A.label("L_tail_b")
    oflag()
    if cfg.wb:
        lb = A.newlabel("nowb")
        A(f"s_and_b32 s8, s{sID}, {cfg.wb[0]}"); A(f"s_or_b32 s8, s8, s{sW4}"); A(f"s_cbranch_scc1 {lb}")
        if cfg.wb[1]: A(f"s_sleep {cfg.wb[1]}")
        A("buffer_wbl2 sc1")
        A.label(lb)
    if cfg.restore:
        barrier()
        ost("sc1")()
    dump_stamps()
    A("s_endpgm")

    A.reset()
    A.label("L_side_slow")
    stamp("slow")
    A(f"s_mov_b32 s8, {SPIN_MAX}")
    A.label("L_side_lp")
    A("s_sleep 4")
    for l in side_ld: A(l)
    A("s_waitcnt vmcnt(0)")
    side_cmp()
    A("s_cbranch_vccz L_side_ok")
    A("s_sub_u32 s8, s8, 1"); A("s_cmp_lg_u32 s8, 0"); A("s_cbranch_scc1 L_side_lp")
    A("s_branch L_side_ok")

    A.reset()
    A.label("L_fallback")
    A("s_cmp_lg_u32 s15, 0"); A("s_cbranch_scc1 L_checked")
    A("s_mov_b32 s15, 1")
    SB, CM = S[1], O[0]
    A(f"s_mov_b32 s{sKV}, s{sKV0}"); A("s_mov_b32 s8, 64")
    A("v_mov_b32 v1, 0xff800000")
    A.label("L_fb1")
    A(f"buffer_load_dwordx4 {Kr(0)}, v{vKo}, {WS}, s{sKV} offen sc1")
    A("s_waitcnt vmcnt(0)")
    A(f"v_mfma_f32_32x32x16_bf16 {vr(SB,16)}, {Kr(0)}, {vr(Q[3],4)}, 0")
    for i in range(8): A(f"v_max3_f32 v1, v1, v{SB+2*i}, v{SB+2*i+1}")
    A(f"s_add_u32 s{sKV}, s{sKV}, 2048"); A("s_sub_u32 s8, s8, 1"); A("s_cmp_lg_u32 s8, 0"); A("s_cbranch_scc1 L_fb1")
    A("v_mov_b32 v2, v1")
    A("v_permlane32_swap_b32 v1, v2")
    A("v_max_f32 v1, v1, v2")
    for r in range(16): A(f"v_sub_f32 v{CM+r}, 0, v1")
    for r in range(16): A(f"v_mov_b32 v{OB+r}, 0")
    A(f"s_mov_b32 s{sKV}, s{sKV0}"); A("s_mov_b32 s8, 64")
    A.label("L_fb2")
    A(f"buffer_load_dwordx4 {Kr(0)}, v{vKo}, {WS}, s{sKV} offen sc1")
    A(f"s_mov_b64 exec, s[{sVM}:{sVM+1}]")
    for j in range(2): A(f"buffer_load_dwordx4 {Vr(0,j)}, v{vVo}, {WS}, s{sKV} offen offset:{1024+512*j} sc1")
    A("s_mov_b64 exec, -1")
    A("s_waitcnt vmcnt(0)")
    A(f"v_mfma_f32_32x32x16_bf16 {vr(SB,16)}, {Kr(0)}, {vr(Q[3],4)}, {vr(CM,16)}")
    ex(3, 0, 16)
    sm(3, 0, 0); sm(3, 0, 1)
    A(f"s_add_u32 s{sKV}, s{sKV}, 2048"); A("s_sub_u32 s8, s8, 1"); A("s_cmp_lg_u32 s8, 0"); A("s_cbranch_scc1 L_fb2")
    A("s_nop 15")
    A("s_branch L_norm")
    A.label("L_end")
    A("s_endpgm")
    return A

HEAD = """; fused gated mix of an S4 long convolution and a 32-head attention block (generated by gen/gen.py)
; one workgroup per CU: (head group hg of 4 heads, token block tb of 64 tokens), 8 waves
; @launch grid=(256,1,1) block=(512,1,1) lds=%d
.amdgcn_target "amdgcn-amd-amdhsa--gfx950"
.text
.globl %s
.p2align 8
.type %s,@function
""" % (LDS_BYTES, NAME, NAME)
TAIL = """.section .rodata,"a"
.p2align 6
.amdhsa_kernel %s
  .amdhsa_next_free_vgpr 256
  .amdhsa_next_free_sgpr 102
  .amdhsa_accum_offset 256
  .amdhsa_group_segment_fixed_size 0
  .amdhsa_kernarg_size 128
  .amdhsa_user_sgpr_count 2
  .amdhsa_user_sgpr_kernarg_segment_ptr 1
  .amdhsa_system_sgpr_workgroup_id_x 1
.end_amdhsa_kernel
""" % NAME

def build(**kw):
    cfg = Cfg()
    for k, v in kw.items(): setattr(cfg, k, v)
    A = gen(cfg)
    return HEAD + A.text() + TAIL

if __name__ == "__main__":
    kw = {}
    out = "gated_mix__ssm_conv_s4__mha_block__prompt.s"
    for a in sys.argv[1:]:
        k, v = a.split("=", 1)
        if k == "out": out = v
        else: kw[k] = eval(v)
    open(out, "w").write(build(**kw))
    print("wrote", out)
```

```python
import gen as G, sys
N = G.NAME
def amp(j, M, mode='max'):
    L = []; A = L.append
    A("s_cmp_lg_u32 s2, 0"); A("s_cbranch_scc1 L_amp_end")
    A("s_load_dwordx2 s[4:5], s[0:1], 120")
    A("v_lshlrev_b32 v1, 8, v0")
    A(f"v_add_u32 v1, {G.WS_STAMP}, v1")
    A("v_mov_b32 v4, -1"); A("v_mov_b32 v5, 0")
    A("s_mov_b32 s8, 32")
    A("s_waitcnt lgkmcnt(0)")
    A("L_amp1:")
    A("global_load_dword v2, v1, s[4:5]")
    A(f"global_load_dword v3, v1, s[4:5] offset:{4*j}")
    A("s_waitcnt vmcnt(0)")
    A("v_min_u32 v4, v4, v2")
    if mode == "max": A("v_max_u32 v5, v5, v3")
    elif mode[0] == "x": A("v_max_u32 v5, v5, v3")
    else: A("v_add_u32 v5, v5, v3")
    A("v_add_u32 v1, 16384, v1")
    A("s_sub_u32 s8, s8, 1"); A("s_cmp_lg_u32 s8, 0"); A("s_cbranch_scc1 L_amp1")
    A("s_mov_b32 s10, -1"); A("s_mov_b32 s11, 0")
    for l in range(64):
        A(f"v_readlane_b32 s12, v4, {l}"); A(f"v_readlane_b32 s13, v5, {l}"); A("s_nop 1"); A("s_min_u32 s10, s10, s12")
        use = mode == "max" or ((l & 7) < 4) == (mode[-1] == "G")
        if use: A("s_max_u32 s11, s11, s13" if mode == "max" or mode[0] == "x" else "s_add_u32 s11, s11, s13")
    if mode == "max" or mode[0] == "x": A("s_sub_u32 s11, s11, s10")
    else: A("s_lshl_b32 s12, s10, 10"); A("s_sub_u32 s11, s11, s12"); A("s_lshr_b32 s11, s11, 10")
    A("s_min_u32 s11, s11, 20000")
    A(f"s_mul_i32 s11, s11, {M}"); A("s_add_u32 s11, s11, 10000")
    A("s_mov_b32 s8, 3000000")
    A("L_amp2:")
    A("s_memrealtime s[14:15]"); A("s_waitcnt lgkmcnt(0)")
    A("s_sub_u32 s14, s14, s10")
    A("s_cmp_ge_u32 s14, s11"); A("s_cbranch_scc1 L_amp_end")
    A("s_sub_u32 s8, s8, 1"); A("s_cmp_lg_u32 s8, 0"); A("s_cbranch_scc1 L_amp2")
    A("L_amp_end:")
    body = "\n".join("    " + x for x in L)
    return f""".text
.globl amp_kernel
.p2align 8
.type amp_kernel,@function
amp_kernel:
{body}
    s_endpgm
.section .rodata,"a"
.p2align 6
.amdhsa_kernel amp_kernel
  .amdhsa_next_free_vgpr 8
  .amdhsa_next_free_sgpr 24
  .amdhsa_accum_offset 8
  .amdhsa_group_segment_fixed_size 0
  .amdhsa_kernarg_size 128
  .amdhsa_user_sgpr_count 2
  .amdhsa_user_sgpr_kernarg_segment_ptr 1
  .amdhsa_system_sgpr_workgroup_id_x 1
.end_amdhsa_kernel
"""
names = sys.argv[2:]
kw = eval(sys.argv[1])
base = G.build(**kw)
line = "; @launch grid=(256,1,1) block=(512,1,1) lds=%d\n" % G.LDS_BYTES
main = f"; @launch kernel={N} grid=(256,1,1) block=(512,1,1) lds={G.LDS_BYTES}\n"
al = "; @launch kernel=amp_kernel grid=(1,1,1) block=(64,1,1) lds=0\n"
for i, nm in enumerate(names):
    mode = "max"
    if nm == "zero": j, M = 0, 0
    else:
        if ":" in nm: mode, nm = nm.split(":")
        j, M = G.STAMPS.index(nm), 4
    open(f"t_amp{i}.s", "w").write(base.replace(line, main + al) + amp(j, M, mode))
print(G.STAMPS)
```
